```python
import torch

def _softmax(x, axis=-1):
    return torch.softmax(x, dim=axis)
def _gelu(x):
    return torch.nn.functional.gelu(x, approximate="tanh")
def _silu(x):
    return torch.nn.functional.silu(x)
def _sigmoid(x):
    return torch.sigmoid(x)
def _layernorm(x, axis=-1, eps=1e-5):
    m = x.mean(dim=axis, keepdim=True)
    v = x.var(dim=axis, keepdim=True, unbiased=False)
    return (x - m) / torch.sqrt(v + eps)
def _scatter_add(tgt, idx, src, axis=0):
    return tgt.clone().index_add_(axis, idx, src)
def _segment_sum(src, seg, n):
    out = torch.zeros((n,) + src.shape[1:], dtype=src.dtype)
    return out.index_add_(0, seg, src)
def _pad(x, pw):
    flat = tuple(v for pair in reversed(pw) for v in pair)
    return torch.nn.functional.pad(x, flat)

kernel_name = 'gated_mix__sliding_block_cached__glu_gated_reglu__decode'

def setup_inputs():

    _w = (lambda a: (lambda t: t.to(torch.bfloat16) if t.is_floating_point() else t)(torch.as_tensor(a)))
    def _A_setup():
        B, Sq, D = 4, 1, 512
        Hq, Hkv, Sk, Dh = 32, 8, 16384, 128
        assert Hq % Hkv == 0, (Hq, Hkv)
        return {
            "x": _w((lambda *s: torch.randn(*s, dtype=torch.bfloat16) * 0.05)(B, Sq, D)),
            "k_cache": _w((lambda *s: torch.randn(*s, dtype=torch.bfloat16) * 3.2)(B, Hkv, Sk, Dh)),
            "v_cache": _w((lambda *s: torch.randn(*s, dtype=torch.bfloat16) * 0.05)(B, Hkv, Sk, Dh)),
            "wq": _w((lambda *s: torch.randn(*s, dtype=torch.bfloat16) * 3.2)(D, Hq * Dh) * (D ** -0.5)),
            "wo": _w((lambda *s: torch.randn(*s, dtype=torch.bfloat16) * 0.05)(Hq * Dh, D) * ((Hq * Dh) ** -0.5)),
        }
    _A_in = _A_setup()

    def _B_setup():
        B, S, D, F = 4, 1, 512, 1792
        return {
            "x": _w((lambda *s: torch.randn(*s, dtype=torch.bfloat16) * 0.05)(B, S, D)),
            "W_gate": _w((lambda *s: torch.randn(*s, dtype=torch.bfloat16) * 0.2)(D, F) * (2.0 / D) ** 0.5),
            "W_up": _w((lambda *s: torch.randn(*s, dtype=torch.bfloat16) * 0.2)(D, F) * (2.0 / D) ** 0.5),
            "W_down": _w((lambda *s: torch.randn(*s, dtype=torch.bfloat16) * 0.2)(F, D) * (1.0 / F) ** 0.5),
        }
    _B_in = _B_setup()

    return {
        "A_x": _A_in["x"],
        "A_k_cache": _A_in["k_cache"],
        "A_v_cache": _A_in["v_cache"],
        "A_wq": _A_in["wq"],
        "A_wo": _A_in["wo"],
        "B_x": _B_in["x"],
        "B_W_gate": _B_in["W_gate"],
        "B_W_up": _B_in["W_up"],
        "B_W_down": _B_in["W_down"],
        "gate_w": _w((lambda *s: torch.randn(*s, dtype=torch.bfloat16) * 0.05)(512) * 16.0),
    }

def reference(A_x, A_k_cache, A_v_cache, A_wq, A_wo, B_x, B_W_gate, B_W_up, B_W_down, gate_w):
    def _A_ref(x, k_cache, v_cache, wq, wo):
        B, Sq, D = x.shape
        Hq, Dh = 32, 128
        Hkv, Sk = k_cache.shape[1], k_cache.shape[2]
        W = min(4096, max(256, Sk // 4))
        rep = Hq // Hkv
        q = (lambda x, *d: x.permute(*d))((x @ wq).reshape(B, Sq, Hq, Dh), 0, 2, 1, 3)
        k = (lambda x, n, axis: torch.repeat_interleave(x, n, dim=axis))(k_cache[:, :, Sk - W:, :], rep, axis=1)
        v = (lambda x, n, axis: torch.repeat_interleave(x, n, dim=axis))(v_cache[:, :, Sk - W:, :], rep, axis=1)
        scores = torch.einsum("bhqd,bhkd->bhqk", q, k) * (Dh ** -0.5)
        p = _softmax(scores, axis=-1)
        o = torch.einsum("bhqk,bhkd->bhqd", p, v)
        return (lambda x, *d: x.permute(*d))(o, 0, 2, 1, 3).reshape(B, Sq, Hq * Dh) @ wo

    def _B_ref(x, W_gate, W_up, W_down):
        gate = torch.einsum("bsd,df->bsf", x, W_gate)
        up = torch.einsum("bsd,df->bsf", x, W_up)
        gate = gate * (lambda x, dt: x.to(dt))(gate > 0, gate.dtype)
        h = gate * up
        return torch.einsum("bsf,fd->bsd", h, W_down)

    x = A_x
    g = _sigmoid((x * gate_w).sum(-1, keepdims=True))
    a = _A_ref(x, A_k_cache, A_v_cache, A_wq, A_wo)
    b = _B_ref(x, B_W_gate, B_W_up, B_W_down)
    return g * a + (1 - g) * b
```

```python
import sys

OUT = sys.argv[1] if len(sys.argv) > 1 else "gated_mix__sliding_block_cached__glu_gated_reglu__decode.s"

WS_QP = 0x000000
WS_GP = 0x040000
WS_UP = 0x060000
WS_OP = 0x080000
WS_ST = 0x100000
WS_P3 = 0x110000
WS_END = 0x170000

L = []
def e(s=""):
    L.append("    " + s if s and not s.endswith(":") else s)
def c(s):
    L.append("    ; " + s)

def header():
    L.append(open("gated_mix__sliding_block_cached__glu_gated_reglu__decode.s.ref").read().split("; Override launch geometry")[0].rstrip())
    L.append("; @launch kernel=k1_proj_kernel grid=(240,1,1) block=(256,1,1) lds=8192")
    L.append("; @launch kernel=k2_attn_kernel grid=(256,1,1) block=(1024,1,1) lds=34816")
    L.append("; @launch kernel=k3_oproj_kernel grid=(184,1,1) block=(256,1,1) lds=9216")
    L.append("; @launch kernel=k4_final_kernel grid=(8,1,1) block=(256,1,1) lds=0")
    L.append('.amdgcn_target "amdgcn-amd-amdhsa--gfx950"')
    L.append(".text")

def kernel_begin(name):
    L.append(f".globl {name}")
    L.append(".p2align 8")
    L.append(f".type {name},@function")
    L.append(f"{name}:")

def srd(dst, ptr, nbytes):
    e(f"s_mov_b32 s{dst}, s{ptr}")
    e(f"s_and_b32 s{dst+1}, s{ptr+1}, 0xffff")
    e(f"s_mov_b32 s{dst+2}, {nbytes}")
    e(f"s_mov_b32 s{dst+3}, 0x00020000")

def gemv_macro(a_reg, w_base, acc_base, b_base, sel_lo, sel_hi):
    def perms(j):
        q = j >> 1
        sel = sel_hi if (j & 1) else sel_lo
        bs = b_base + 4 * (j & 3)
        for t in range(4):
            x = w_base + 4 * (2 * t) + q
            y = w_base + 4 * (2 * t + 1) + q
            e(f"v_perm_b32 v{bs+t}, v{y}, v{x}, s{sel}")
    def mfma(j):
        bs = b_base + 4 * (j & 3)
        e(f"v_mfma_f32_16x16x32_bf16 v[{acc_base+4*j}:{acc_base+4*j+3}], v[{a_reg}:{a_reg+3}], v[{bs}:{bs+3}], 0")
    perms(0)
    for j in range(8):
        if j + 1 < 8:
            perms(j + 1)
        else:
            e("s_nop 1")
        mfma(j)

def lds_reduce4_store(acc_base, vaddr, vt0, srd_out, s_out_off, ostride_s):
    e("s_nop 7")
    e("s_mov_b64 exec, 0xffff")
    for j in range(8):
        e(f"ds_write_b128 v{vaddr}, v[{acc_base+4*j}:{acc_base+4*j+3}] offset:{16*j}")
    e("s_mov_b64 exec, -1")
    e("s_waitcnt lgkmcnt(0)")
    e("s_barrier")
    t = vt0
    e(f"v_lshlrev_b32 v{t}, 2, v0")
    for w in range(4):
        e(f"ds_read_b32 v{t+2+w}, v{t} offset:{2048*w}")
        e(f"ds_read_b32 v{t+6+w}, v{t} offset:{2048*w+1024}")
    e(f"v_and_b32 v{t+10}, 3, v0")
    e(f"v_mul_lo_u32 v{t+10}, v{t+10}, s{ostride_s}")
    e(f"v_lshrrev_b32 v{t+11}, 5, v0")
    e(f"v_lshlrev_b32 v{t+11}, 3, v{t+11}")
    e(f"v_bfe_u32 v{t+12}, v0, 2, 3")
    e(f"v_add3_u32 v{t+10}, v{t+10}, v{t+11}, v{t+12}")
    e(f"v_lshlrev_b32 v{t+10}, 2, v{t+10}")
    e("s_waitcnt lgkmcnt(0)")
    e(f"v_add_f32 v{t+2}, v{t+2}, v{t+3}")
    e(f"v_add_f32 v{t+4}, v{t+4}, v{t+5}")
    e(f"v_add_f32 v{t+6}, v{t+6}, v{t+7}")
    e(f"v_add_f32 v{t+8}, v{t+8}, v{t+9}")
    e(f"v_add_f32 v{t+2}, v{t+2}, v{t+4}")
    e(f"v_add_f32 v{t+6}, v{t+6}, v{t+8}")
    e(f"buffer_store_dword v{t+2}, v{t+10}, s[{srd_out}:{srd_out+3}], s{s_out_off} offen")
    e(f"buffer_store_dword v{t+6}, v{t+10}, s[{srd_out}:{srd_out+3}], s{s_out_off} offen offset:256")

def xlane_g(v, tmp, op):
    for sw in ("v_permlane16_swap_b32", "v_permlane32_swap_b32"):
        e(f"v_mov_b32 v{tmp}, v{v}")
        e("s_nop 1")
        e(f"{sw} v{v}, v{tmp}")
        e("s_nop 1")
        e(f"{op} v{v}, v{v}, v{tmp}")

def k1():
    kernel_begin("k1_proj_kernel")
    e("s_cmp_ge_u32 s2, 240")
    e("s_cbranch_scc1 K1_END")
    e("s_load_dwordx2 s[4:5], s[0:1], 0")
    e("s_load_dwordx2 s[6:7], s[0:1], 24")
    e("s_load_dwordx2 s[8:9], s[0:1], 48")
    e("s_load_dwordx2 s[10:11], s[0:1], 56")
    e("s_load_dwordx2 s[12:13], s[0:1], 96")
    e("s_lshr_b32 s3, s2, 2")
    e("s_and_b32 s14, s2, 3")
    e("v_lshrrev_b32 v1, 6, v0")
    e("v_and_b32 v2, 63, v0")
    e("v_readfirstlane_b32 s15, v1")
    e("v_and_b32 v3, 15, v2")
    e("v_lshrrev_b32 v4, 4, v2")
    e("s_mov_b32 s44, 0x05040100")
    e("s_mov_b32 s45, 0x07060302")
    e("s_waitcnt lgkmcnt(0)")
    srd(16, 4, 4096)
    srd(20, 12, WS_END)
    e("s_cmp_ge_u32 s3, 32")
    e("s_cbranch_scc1 K1_NOTQ")
    srd(24, 6, 4194304)
    e("s_mov_b32 s36, 8192")
    e("s_lshl_b32 s37, s3, 8")
    e(f"s_mov_b32 s38, {WS_QP}")
    e("s_mov_b32 s39, 4096")
    e("s_lshl_b32 s40, s3, 7")
    e("s_branch K1_COMMON")
    L.append("K1_NOTQ:")
    e("s_cmp_ge_u32 s3, 46")
    e("s_cbranch_scc1 K1_UP")
    srd(24, 8, 1835008)
    e("s_sub_u32 s3, s3, 32")
    e(f"s_mov_b32 s38, {WS_GP}")
    e("s_branch K1_FF")
    L.append("K1_UP:")
    srd(24, 10, 1835008)
    e("s_sub_u32 s3, s3, 46")
    e(f"s_mov_b32 s38, {WS_UP}")
    L.append("K1_FF:")
    e("s_mov_b32 s36, 3584")
    e("s_lshl_b32 s37, s3, 8")
    e("s_mov_b32 s39, 1792")
    e("s_lshl_b32 s40, s3, 7")
    L.append("K1_COMMON:")
    e("s_lshl_b32 s41, s14, 7")
    e("s_lshl_b32 s42, s15, 5")
    e("s_add_u32 s41, s41, s42")
    e("s_mul_i32 s28, s41, s36")
    e("s_add_u32 s28, s28, s37")
    for i in range(1, 8):
        e(f"s_add_u32 s{28+i}, s{27+i}, s36")
    e("s_lshl_b32 s46, s36, 3")
    e("v_mul_lo_u32 v5, v4, s46")
    e("v_lshl_add_u32 v5, v3, 4, v5")
    e("v_and_b32 v6, 3, v3")
    e("v_lshlrev_b32 v6, 10, v6")
    e("v_lshl_add_u32 v6, v4, 4, v6")
    e("s_lshl_b32 s43, s41, 1")
    e("buffer_load_dwordx4 v[8:11], v6, s[16:19], s43 offen")
    for i in range(8):
        e(f"buffer_load_dwordx4 v[{16+4*i}:{19+4*i}], v5, s[24:27], s{28+i} offen")
    e("s_lshl_b32 s47, s14, 2")
    e("s_mul_i32 s47, s47, s39")
    e("s_add_u32 s47, s47, s40")
    e("s_lshl_b32 s47, s47, 2")
    e("s_add_u32 s47, s47, s38")
    e("s_lshl_b32 s48, s15, 11")
    e("v_lshlrev_b32 v7, 7, v3")
    e("v_add_u32 v7, s48, v7")
    e("s_waitcnt vmcnt(0)")
    gemv_macro(8, 16, 48, 80, 44, 45)
    lds_reduce4_store(48, 7, 96, 20, 47, 39)
    L.append("K1_END:")
    e("s_endpgm")

def k2():
    kernel_begin("k2_attn_kernel")
    LDS_Q = 0
    LDS_ST = 1024
    LDS_O = 2048
    e("s_cmp_ge_u32 s2, 256")
    e("s_cbranch_scc1 K2_END")
    e("s_load_dwordx4 s[4:7], s[0:1], 8")
    e("s_load_dwordx2 s[8:9], s[0:1], 96")
    e("s_lshr_b32 s3, s2, 3")
    e("s_and_b32 s10, s2, 7")
    e("v_lshrrev_b32 v1, 6, v0")
    e("v_and_b32 v2, 63, v0")
    e("v_readfirstlane_b32 s11, v1")
    e("v_and_b32 v3, 15, v2")
    e("v_lshrrev_b32 v4, 4, v2")
    e("s_mov_b32 s44, 0x05040100")
    e("s_mov_b32 s45, 0x07060302")
    e("s_mov_b32 s46, 0x3e0293ee")
    e("s_waitcnt lgkmcnt(0)")
    srd(12, 4, 134217728)
    srd(16, 6, 134217728)
    srd(20, 8, WS_END)
    e("s_lshr_b32 s24, s3, 3")
    e("s_and_b32 s25, s3, 7")
    e("s_lshl_b32 s26, s24, 14")
    e("s_lshl_b32 s27, s25, 11")
    e("s_add_u32 s26, s26, s27")
    e(f"s_add_u32 s26, s26, {WS_QP}")
    e("v_and_b32 v5, 511, v0")
    e("v_lshlrev_b32 v5, 2, v5")
    for ks in range(4):
        if ks:
            e("s_add_u32 s26, s26, 65536")
        e(f"buffer_load_dword v{8+ks}, v5, s[20:23], s26 offen")
    e("s_lshl_b32 s28, s3, 22")
    e("s_lshl_b32 s29, s10, 17")
    e("s_add_u32 s28, s28, s29")
    e("s_lshl_b32 s29, s11, 13")
    e("s_add_u32 s28, s28, s29")
    e("s_add_u32 s28, s28, 3145728")
    e("s_add_u32 s29, s28, 4096")
    e("v_lshlrev_b32 v6, 8, v3")
    e("v_lshl_add_u32 v6, v4, 4, v6")
    e("v_lshlrev_b32 v7, 10, v4")
    e("v_lshl_add_u32 v7, v3, 4, v7")
    for blk in range(2):
        for j in range(4):
            r = 16 + 16 * blk + 4 * j
            e(f"buffer_load_dwordx4 v[{r}:{r+3}], v6, s[12:15], s{28+blk} offen offset:{64*j}")
    for i in range(8):
        r = 48 + 4 * i
        e(f"buffer_load_dwordx4 v[{r}:{r+3}], v7, s[16:19], s{28+(i>>2)} offen offset:{256*(i&3)}")
    e("s_waitcnt vmcnt(16)")
    e("v_add_f32 v8, v8, v9")
    e("v_add_f32 v10, v10, v11")
    e("v_add_f32 v8, v8, v10")
    e("v_cvt_pk_bf16_f32 v8, v8, v8")
    e("v_lshrrev_b32 v5, 1, v5")
    e(f"ds_write_b16 v5, v8 offset:{LDS_Q}")
    e("s_waitcnt lgkmcnt(0)")
    e("s_barrier")
    e("v_and_b32 v5, 3, v3")
    e("v_lshlrev_b32 v5, 8, v5")
    e("v_lshl_add_u32 v5, v4, 4, v5")
    for j in range(4):
        e(f"ds_read_b128 v[{80+4*j}:{83+4*j}], v5 offset:{LDS_Q+64*j}")
    e("s_waitcnt vmcnt(8) lgkmcnt(0)")
    for blk in range(2):
        d = 96 + 4 * blk
        for j in range(4):
            r = 16 + 16 * blk + 4 * j
            cin = "0" if j == 0 else f"v[{d}:{d+3}]"
            e(f"v_mfma_f32_16x16x32_bf16 v[{d}:{d+3}], v[{r}:{r+3}], v[{80+4*j}:{83+4*j}], {cin}")
    e("s_nop 7")
    e("v_max3_f32 v108, v96, v97, v98")
    e("v_max3_f32 v108, v108, v99, v100")
    e("v_max3_f32 v108, v108, v101, v102")
    e("v_max_f32 v108, v108, v103")
    xlane_g(108, 109, "v_max_f32")
    e("v_mul_f32 v110, s46, v108")
    e("v_sub_f32 v111, 0, v110")
    for i in range(8):
        e(f"v_fma_f32 v{96+i}, v{96+i}, s46, v111")
    for i in range(8):
        e(f"v_exp_f32 v{96+i}, v{96+i}")
    e("s_nop 0")
    e("v_add_f32 v112, v96, v97")
    e("v_add_f32 v113, v98, v99")
    e("v_add_f32 v114, v100, v101")
    e("v_add_f32 v115, v102, v103")
    e("v_add_f32 v112, v112, v113")
    e("v_add_f32 v114, v114, v115")
    e("v_add_f32 v112, v112, v114")
    xlane_g(112, 113, "v_add_f32")
    for t in range(4):
        e(f"v_cvt_pk_bf16_f32 v{104+t}, v{96+2*t}, v{97+2*t}")
    e("s_waitcnt vmcnt(0)")
    gemv_macro(104, 48, 16, 80, 44, 45)
    e("s_nop 7")
    e("s_lshl_b32 s30, s11, 11")
    e("v_lshlrev_b32 v5, 7, v3")
    e("v_add_u32 v5, s30, v5")
    e("s_mov_b64 exec, 0xffff")
    for j in range(8):
        e(f"ds_write_b128 v5, v[{16+4*j}:{19+4*j}] offset:{LDS_O+16*j}")
    e("s_mov_b64 exec, 0xf")
    e("s_lshl_b32 s30, s11, 5")
    e("v_lshlrev_b32 v5, 3, v3")
    e("v_add_u32 v5, s30, v5")
    e("v_mov_b32 v111, v112")
    e(f"ds_write_b64 v5, v[110:111] offset:{LDS_ST}")
    e("s_mov_b64 exec, -1")
    e("s_waitcnt lgkmcnt(0)")
    e("s_barrier")
    e("s_cmp_ge_u32 s11, 8")
    e("s_cbranch_scc1 K2_END")
    e("v_and_b32 v5, 3, v0")
    e("v_lshlrev_b32 v5, 3, v5")
    e("v_lshlrev_b32 v6, 2, v0")
    for w in range(16):
        e(f"ds_read_b64 v[{16+2*w}:{17+2*w}], v5 offset:{LDS_ST+32*w}")
    for w in range(16):
        e(f"ds_read_b32 v{48+w}, v6 offset:{LDS_O+2048*w}")
    e("s_waitcnt lgkmcnt(0)")
    e("v_max3_f32 v8, v16, v18, v20")
    for w in range(3, 15, 2):
        e(f"v_max3_f32 v8, v8, v{16+2*w}, v{18+2*w}")
    e("v_max_f32 v8, v8, v46")
    for w in range(16):
        e(f"v_sub_f32 v{16+2*w}, v{16+2*w}, v8")
    for w in range(16):
        e(f"v_exp_f32 v{16+2*w}, v{16+2*w}")
    e("v_mov_b32 v9, 0")
    e("v_mov_b32 v10, 0")
    for w in range(16):
        e(f"v_fmac_f32 v9, v{16+2*w}, v{17+2*w}")
        e(f"v_fmac_f32 v10, v{16+2*w}, v{48+w}")
    e("s_lshl_b32 s30, s24, 5")
    e("s_lshl_b32 s31, s25, 2")
    e("s_add_u32 s30, s30, s31")
    e("s_lshl_b32 s30, s30, 3")
    e("s_add_u32 s30, s30, s10")
    e("s_lshl_b32 s31, s30, 9")
    e(f"s_add_u32 s31, s31, {WS_OP}")
    e("v_and_b32 v11, 3, v0")
    e("v_lshlrev_b32 v12, 12, v11")
    e("v_lshrrev_b32 v13, 5, v0")
    e("v_lshlrev_b32 v13, 5, v13")
    e("v_bfe_u32 v14, v0, 2, 3")
    e("v_lshl_add_u32 v13, v14, 2, v13")
    e("v_add_u32 v12, v12, v13")
    e("buffer_store_dword v10, v12, s[20:23], s31 offen")
    e("s_cmp_lg_u32 s11, 0")
    e("s_cbranch_scc1 K2_END")
    e("s_mov_b64 exec, 0xf")
    e("s_lshl_b32 s31, s30, 3")
    e(f"s_add_u32 s31, s31, {WS_ST}")
    e("v_lshlrev_b32 v12, 6, v11")
    e("v_mov_b32 v7, v9")
    e("v_mov_b32 v6, v8")
    e("buffer_store_dwordx2 v[6:7], v12, s[20:23], s31 offen")
    L.append("K2_END:")
    e("s_endpgm")

def k3():
    kernel_begin("k3_oproj_kernel")
    LDS_A = 8192
    e("s_cmp_ge_u32 s2, 184")
    e("s_cbranch_scc1 K3_END")
    e("s_load_dwordx2 s[4:5], s[0:1], 32")
    e("s_load_dwordx2 s[6:7], s[0:1], 64")
    e("s_load_dwordx2 s[8:9], s[0:1], 96")
    e("s_lshr_b32 s3, s2, 2")
    e("s_and_b32 s10, s2, 3")
    e("v_lshrrev_b32 v1, 6, v0")
    e("v_and_b32 v2, 63, v0")
    e("v_readfirstlane_b32 s11, v1")
    e("v_and_b32 v3, 15, v2")
    e("v_lshrrev_b32 v4, 4, v2")
    e("s_mov_b32 s44, 0x05040100")
    e("s_mov_b32 s45, 0x07060302")
    e("v_lshlrev_b32 v5, 13, v4")
    e("v_lshl_add_u32 v5, v3, 4, v5")
    e("s_lshl_b32 s24, s11, 15")
    e("s_lshl_b32 s25, s10, 8")
    e("s_add_u32 s24, s24, s25")
    e("s_waitcnt lgkmcnt(0)")
    srd(20, 8, WS_END)
    e("s_cmp_ge_u32 s3, 32")
    e("s_cbranch_scc1 K3_FFN")
    srd(12, 4, 4194304)
    e("s_lshl_b32 s25, s3, 17")
    e("s_add_u32 s24, s24, s25")
    e("s_add_u32 s25, s24, 4096")
    for i in range(8):
        e(f"buffer_load_dwordx4 v[{16+4*i}:{19+4*i}], v5, s[12:15], s{24+(i>>2)} offen offset:{1024*(i&3)}")
    e("v_lshrrev_b32 v6, 7, v0")
    e("v_and_b32 v7, 127, v0")
    e("v_lshlrev_b32 v8, 17, v6")
    e("v_lshl_add_u32 v8, v7, 2, v8")
    e("v_add_u32 v9, 0x40000, v8")
    e("v_lshlrev_b32 v10, 11, v6")
    e("v_add_u32 v11, 0x1000, v10")
    e("s_lshl_b32 s26, s3, 12")
    e(f"s_add_u32 s26, s26, {WS_OP}")
    e("s_lshl_b32 s27, s3, 6")
    e(f"s_add_u32 s27, s27, {WS_ST}")
    for s in range(8):
        e(f"buffer_load_dword v{96+s}, v8, s[20:23], s26 offen offset:{512*s}")
        e(f"buffer_load_dword v{104+s}, v9, s[20:23], s26 offen offset:{512*s}")
        e(f"buffer_load_dwordx2 v[{112+2*s}:{113+2*s}], v10, s[20:23], s27 offen offset:{8*s}")
        e(f"buffer_load_dwordx2 v[{128+2*s}:{129+2*s}], v11, s[20:23], s27 offen offset:{8*s}")
    e("s_waitcnt vmcnt(0)")
    for el in range(2):
        ob = 96 + 8 * el
        sb = 112 + 16 * el
        e(f"v_max3_f32 v12, v{sb}, v{sb+2}, v{sb+4}")
        e(f"v_max3_f32 v12, v12, v{sb+6}, v{sb+8}")
        e(f"v_max3_f32 v12, v12, v{sb+10}, v{sb+12}")
        e(f"v_max_f32 v12, v12, v{sb+14}")
        for s in range(8):
            e(f"v_sub_f32 v{sb+2*s}, v{sb+2*s}, v12")
        for s in range(8):
            e(f"v_exp_f32 v{sb+2*s}, v{sb+2*s}")
        e("v_mov_b32 v13, 0")
        e("v_mov_b32 v14, 0")
        for s in range(8):
            e(f"v_fmac_f32 v13, v{sb+2*s}, v{sb+2*s+1}")
            e(f"v_fmac_f32 v14, v{sb+2*s}, v{ob+s}")
        e("v_rcp_f32 v13, v13")
        e("s_nop 0")
        e(f"v_mul_f32 v{80+el}, v14, v13")
    e("s_branch K3_ACT")
    L.append("K3_FFN:")
    srd(12, 6, 1835008)
    e("s_sub_u32 s3, s3, 32")
    e("s_lshl_b32 s25, s3, 17")
    e("s_add_u32 s24, s24, s25")
    e("s_add_u32 s25, s24, 4096")
    for i in range(8):
        e(f"buffer_load_dwordx4 v[{16+4*i}:{19+4*i}], v5, s[12:15], s{24+(i>>2)} offen offset:{1024*(i&3)}")
    e("v_lshrrev_b32 v6, 7, v0")
    e("v_and_b32 v7, 127, v0")
    e("v_mov_b32 v8, 7168")
    e("v_mul_lo_u32 v8, v6, v8")
    e("v_lshl_add_u32 v8, v7, 2, v8")
    e("v_add_u32 v9, 14336, v8")
    e("s_lshl_b32 s26, s3, 9")
    e(f"s_add_u32 s27, s26, {WS_UP}")
    e(f"s_add_u32 s26, s26, {WS_GP}")
    for ks in range(4):
        e(f"buffer_load_dword v{96+ks}, v8, s[20:23], s26 offen")
        e(f"buffer_load_dword v{100+ks}, v9, s[20:23], s26 offen")
        e(f"buffer_load_dword v{104+ks}, v8, s[20:23], s27 offen")
        e(f"buffer_load_dword v{108+ks}, v9, s[20:23], s27 offen")
        if ks < 3:
            e("s_add_u32 s26, s26, 28672")
            e("s_add_u32 s27, s27, 28672")
    e("s_waitcnt vmcnt(0)")
    for el in range(2):
        gb = 96 + 4 * el
        ub = 104 + 4 * el
        e(f"v_add_f32 v{gb}, v{gb}, v{gb+1}")
        e(f"v_add_f32 v{gb+2}, v{gb+2}, v{gb+3}")
        e(f"v_add_f32 v{gb}, v{gb}, v{gb+2}")
        e(f"v_add_f32 v{ub}, v{ub}, v{ub+1}")
        e(f"v_add_f32 v{ub+2}, v{ub+2}, v{ub+3}")
        e(f"v_add_f32 v{ub}, v{ub}, v{ub+2}")
        e(f"v_cvt_pk_bf16_f32 v12, v{gb}, v{ub}")
        e("v_lshlrev_b32 v13, 16, v12")
        e("v_and_b32 v14, 0xffff0000, v12")
        e("v_max_f32 v13, 0, v13")
        e(f"v_mul_f32 v{80+el}, v13, v14")
    L.append("K3_ACT:")
    e("v_cvt_pk_bf16_f32 v82, v80, v81")
    e("v_lshlrev_b32 v12, 8, v6")
    e("v_lshl_add_u32 v12, v7, 1, v12")
    e(f"ds_write_b16 v12, v82 offset:{LDS_A}")
    e(f"ds_write_b16_d16_hi v12, v82 offset:{LDS_A+512}")
    e("s_waitcnt lgkmcnt(0)")
    e("s_barrier")
    e("v_and_b32 v12, 3, v3")
    e("v_lshlrev_b32 v12, 8, v12")
    e("v_lshl_add_u32 v12, v4, 4, v12")
    e("s_lshl_b32 s28, s11, 6")
    e("v_add_u32 v12, s28, v12")
    e(f"ds_read_b128 v[8:11], v12 offset:{LDS_A}")
    e("s_lshr_b32 s3, s2, 2")
    e("s_lshl_b32 s47, s3, 13")
    e("s_lshl_b32 s28, s10, 9")
    e("s_add_u32 s47, s47, s28")
    e(f"s_add_u32 s47, s47, {WS_P3}")
    e("s_mov_b32 s39, 512")
    e("s_lshl_b32 s48, s11, 11")
    e("v_lshlrev_b32 v7, 7, v3")
    e("v_add_u32 v7, s48, v7")
    e("s_waitcnt lgkmcnt(0)")
    gemv_macro(8, 16, 48, 80, 44, 45)
    lds_reduce4_store(48, 7, 96, 20, 47, 39)
    L.append("K3_END:")
    e("s_endpgm")

def rne(v, tmp):
    e(f"v_cvt_pk_bf16_f32 v{tmp}, v{v}, v{v}")
    e(f"v_lshlrev_b32 v{v}, 16, v{tmp}")

def k4():
    kernel_begin("k4_final_kernel")
    e("s_cmp_ge_u32 s2, 8")
    e("s_cbranch_scc1 K4_END")
    e("s_load_dwordx2 s[4:5], s[0:1], 0")
    e("s_load_dwordx2 s[6:7], s[0:1], 72")
    e("s_load_dwordx2 s[8:9], s[0:1], 80")
    e("s_load_dwordx2 s[10:11], s[0:1], 96")
    e("s_lshl_b32 s3, s2, 8")
    e("v_add_u32 v1, s3, v0")
    e("v_and_b32 v2, 63, v0")
    e("s_waitcnt lgkmcnt(0)")
    srd(12, 4, 4096)
    srd(16, 6, 1024)
    srd(20, 8, 4096)
    srd(24, 10, WS_END)
    e("v_lshlrev_b32 v3, 2, v1")
    e(f"s_mov_b32 s28, {WS_P3}")
    for kg in range(46):
        e(f"buffer_load_dword v{16+kg}, v3, s[24:27], s28 offen")
        if kg < 45:
            e("s_add_u32 s28, s28, 8192")
    e("s_lshr_b32 s29, s2, 1")
    e("s_lshl_b32 s29, s29, 10")
    e("v_lshlrev_b32 v4, 4, v2")
    e("buffer_load_dwordx4 v[64:67], v4, s[12:15], s29 offen")
    e("buffer_load_dwordx4 v[68:71], v4, s[16:19], 0 offen")
    e("s_waitcnt vmcnt(0)")
    e("v_mov_b32 v80, 0")
    for q in range(4):
        e(f"v_lshlrev_b32 v72, 16, v{64+q}")
        e(f"v_and_b32 v73, 0xffff0000, v{64+q}")
        e(f"v_lshlrev_b32 v74, 16, v{68+q}")
        e(f"v_and_b32 v75, 0xffff0000, v{68+q}")
        e("v_mul_f32 v72, v72, v74")
        e("v_mul_f32 v73, v73, v75")
        e("v_cvt_pk_bf16_f32 v72, v72, v73")
        e("v_lshlrev_b32 v73, 16, v72")
        e("v_and_b32 v72, 0xffff0000, v72")
        e("v_add_f32 v80, v80, v73")
        e("v_add_f32 v80, v80, v72")
    for ctrl in ("quad_perm:[1,0,3,2]", "quad_perm:[2,3,0,1]", "row_half_mirror", "row_mirror"):
        e("s_nop 1")
        e(f"v_add_f32_dpp v80, v80, v80 {ctrl} row_mask:0xf bank_mask:0xf")
    xlane_g(80, 81, "v_add_f32")
    rne(80, 81)
    e("v_mul_f32 v80, 0xbfb8aa3b, v80")
    e("v_exp_f32 v80, v80")
    e("s_nop 0")
    e("v_add_f32 v80, 1.0, v80")
    e("v_rcp_f32 v80, v80")
    e("s_nop 0")
    rne(80, 81)
    e("v_add_f32 v16, v16, v17")
    for kg in range(2, 32):
        e(f"v_add_f32 v16, v16, v{16+kg}")
    e("v_add_f32 v48, v48, v49")
    for kg in range(34, 46):
        e(f"v_add_f32 v48, v48, v{16+kg}")
    rne(16, 81)
    rne(48, 81)
    e("v_mul_f32 v16, v80, v16")
    rne(16, 81)
    e("v_sub_f32 v82, 1.0, v80")
    rne(82, 81)
    e("v_mul_f32 v48, v82, v48")
    rne(48, 81)
    e("v_add_f32 v16, v16, v48")
    e("v_cvt_pk_bf16_f32 v16, v16, v16")
    e("v_lshlrev_b32 v3, 1, v1")
    e("buffer_store_short v16, v3, s[20:23], 0 offen")
    L.append("K4_END:")
    e("s_endpgm")

def descriptors():
    L.append('.section .rodata,"a"')
    for name, vg, sg in (("k1_proj_kernel", 112, 64), ("k2_attn_kernel", 120, 64), ("k3_oproj_kernel", 144, 64), ("k4_final_kernel", 96, 64)):
        L.append(".p2align 6")
        L.append(f".amdhsa_kernel {name}")
        L.append(f"  .amdhsa_next_free_vgpr {vg}")
        L.append(f"  .amdhsa_next_free_sgpr {sg}")
        L.append(f"  .amdhsa_accum_offset {vg}")
        L.append("  .amdhsa_group_segment_fixed_size 0")
        L.append("  .amdhsa_kernarg_size 104")
        L.append("  .amdhsa_user_sgpr_count 2")
        L.append("  .amdhsa_user_sgpr_kernarg_segment_ptr 1")
        L.append("  .amdhsa_system_sgpr_workgroup_id_x 1")
        L.append(".end_amdhsa_kernel")

header()
k1(); k2(); k3(); k4()
descriptors()
open(OUT, "w").write("\n".join(L) + "\n")
print("wrote", OUT, len(L), "lines")
```

```python
import sys

OUT = sys.argv[1] if len(sys.argv) > 1 else "gated_mix__sliding_block_cached__glu_gated_reglu__decode.s"

WS_QP = 0x000000
WS_GP = 0x040000
WS_UP = 0x060000
WS_OP = 0x080000
WS_ST = 0x100000
WS_P3 = 0x110000
WS_END = 0x170000

L = []
def e(s=""):
    L.append("    " + s if s and not s.endswith(":") else s)
def c(s):
    L.append("    ; " + s)

def header():
    L.append(open("gated_mix__sliding_block_cached__glu_gated_reglu__decode.s.ref").read().split("; Override launch geometry")[0].rstrip())
    L.append("; @launch kernel=k1_proj_kernel grid=(240,1,1) block=(256,1,1) lds=8192")
    L.append("; @launch kernel=k2_attn_kernel grid=(256,1,1) block=(1024,1,1) lds=34816")
    L.append("; @launch kernel=k3_oproj_kernel grid=(184,1,1) block=(256,1,1) lds=9216")
    L.append("; @launch kernel=k4_final_kernel grid=(8,1,1) block=(256,1,1) lds=0")
    L.append('.amdgcn_target "amdgcn-amd-amdhsa--gfx950"')
    L.append(".text")

def kernel_begin(name):
    L.append(f".globl {name}")
    L.append(".p2align 8")
    L.append(f".type {name},@function")
    L.append(f"{name}:")

def srd(dst, ptr, nbytes):
    e(f"s_mov_b32 s{dst}, s{ptr}")
    e(f"s_and_b32 s{dst+1}, s{ptr+1}, 0xffff")
    e(f"s_mov_b32 s{dst+2}, {nbytes}")
    e(f"s_mov_b32 s{dst+3}, 0x00020000")

def gemv_macro(a_reg, w_base, acc_base, b_base, sel_lo, sel_hi):
    def perms(j):
        q = j >> 1
        sel = sel_hi if (j & 1) else sel_lo
        bs = b_base + 4 * (j & 3)
        for t in range(4):
            x = w_base + 4 * (2 * t) + q
            y = w_base + 4 * (2 * t + 1) + q
            e(f"v_perm_b32 v{bs+t}, v{y}, v{x}, s{sel}")
    def mfma(j):
        bs = b_base + 4 * (j & 3)
        e(f"v_mfma_f32_16x16x32_bf16 v[{acc_base+4*j}:{acc_base+4*j+3}], v[{a_reg}:{a_reg+3}], v[{bs}:{bs+3}], 0")
    perms(0)
    for j in range(8):
        if j + 1 < 8:
            perms(j + 1)
        else:
            e("s_nop 1")
        mfma(j)

def lds_reduce4_store(acc_base, vaddr, vt0, srd_out, s_out_off, ostride_s):
    e("s_nop 7")
    e("s_mov_b64 exec, 0xffff")
    for j in range(8):
        e(f"ds_write_b128 v{vaddr}, v[{acc_base+4*j}:{acc_base+4*j+3}] offset:{16*j}")
    e("s_mov_b64 exec, -1")
    e("s_waitcnt lgkmcnt(0)")
    e("s_barrier")
    t = vt0
    e(f"v_lshlrev_b32 v{t}, 2, v0")
    for w in range(4):
        e(f"ds_read_b32 v{t+2+w}, v{t} offset:{2048*w}")
        e(f"ds_read_b32 v{t+6+w}, v{t} offset:{2048*w+1024}")
    e(f"v_and_b32 v{t+10}, 3, v0")
    e(f"v_mul_lo_u32 v{t+10}, v{t+10}, s{ostride_s}")
    e(f"v_lshrrev_b32 v{t+11}, 5, v0")
    e(f"v_lshlrev_b32 v{t+11}, 3, v{t+11}")
    e(f"v_bfe_u32 v{t+12}, v0, 2, 3")
    e(f"v_add3_u32 v{t+10}, v{t+10}, v{t+11}, v{t+12}")
    e(f"v_lshlrev_b32 v{t+10}, 2, v{t+10}")
    e("s_waitcnt lgkmcnt(0)")
    e(f"v_add_f32 v{t+2}, v{t+2}, v{t+3}")
    e(f"v_add_f32 v{t+4}, v{t+4}, v{t+5}")
    e(f"v_add_f32 v{t+6}, v{t+6}, v{t+7}")
    e(f"v_add_f32 v{t+8}, v{t+8}, v{t+9}")
    e(f"v_add_f32 v{t+2}, v{t+2}, v{t+4}")
    e(f"v_add_f32 v{t+6}, v{t+6}, v{t+8}")
    e(f"buffer_store_dword v{t+2}, v{t+10}, s[{srd_out}:{srd_out+3}], s{s_out_off} offen")
    e(f"buffer_store_dword v{t+6}, v{t+10}, s[{srd_out}:{srd_out+3}], s{s_out_off} offen offset:256")

def xlane_g(v, tmp, op):
    for sw in ("v_permlane16_swap_b32", "v_permlane32_swap_b32"):
        e(f"v_mov_b32 v{tmp}, v{v}")
        e("s_nop 1")
        e(f"{sw} v{v}, v{tmp}")
        e("s_nop 1")
        e(f"{op} v{v}, v{v}, v{tmp}")

def k1():
    kernel_begin("k1_proj_kernel")
    e("s_cmp_ge_u32 s2, 240")
    e("s_cbranch_scc1 K1_END")
    e("s_load_dwordx2 s[4:5], s[0:1], 0")
    e("s_load_dwordx2 s[6:7], s[0:1], 24")
    e("s_load_dwordx2 s[8:9], s[0:1], 48")
    e("s_load_dwordx2 s[10:11], s[0:1], 56")
    e("s_load_dwordx2 s[12:13], s[0:1], 96")
    e("s_lshr_b32 s3, s2, 2")
    e("s_and_b32 s14, s2, 3")
    e("v_lshrrev_b32 v1, 6, v0")
    e("v_and_b32 v2, 63, v0")
    e("v_readfirstlane_b32 s15, v1")
    e("v_and_b32 v3, 15, v2")
    e("v_lshrrev_b32 v4, 4, v2")
    e("s_mov_b32 s44, 0x05040100")
    e("s_mov_b32 s45, 0x07060302")
    e("s_waitcnt lgkmcnt(0)")
    srd(16, 4, 4096)
    srd(20, 12, WS_END)
    e("s_cmp_ge_u32 s3, 32")
    e("s_cbranch_scc1 K1_NOTQ")
    srd(24, 6, 4194304)
    e("s_mov_b32 s36, 8192")
    e("s_lshl_b32 s37, s3, 8")
    e(f"s_mov_b32 s38, {WS_QP}")
    e("s_mov_b32 s39, 4096")
    e("s_lshl_b32 s40, s3, 7")
    e("s_branch K1_COMMON")
    L.append("K1_NOTQ:")
    e("s_cmp_ge_u32 s3, 46")
    e("s_cbranch_scc1 K1_UP")
    srd(24, 8, 1835008)
    e("s_sub_u32 s3, s3, 32")
    e(f"s_mov_b32 s38, {WS_GP}")
    e("s_branch K1_FF")
    L.append("K1_UP:")
    srd(24, 10, 1835008)
    e("s_sub_u32 s3, s3, 46")
    e(f"s_mov_b32 s38, {WS_UP}")
    L.append("K1_FF:")
    e("s_mov_b32 s36, 3584")
    e("s_lshl_b32 s37, s3, 8")
    e("s_mov_b32 s39, 1792")
    e("s_lshl_b32 s40, s3, 7")
    L.append("K1_COMMON:")
    e("s_lshl_b32 s41, s14, 7")
    e("s_lshl_b32 s42, s15, 5")
    e("s_add_u32 s41, s41, s42")
    e("s_mul_i32 s28, s41, s36")
    e("s_add_u32 s28, s28, s37")
    for i in range(1, 8):
        e(f"s_add_u32 s{28+i}, s{27+i}, s36")
    e("s_lshl_b32 s46, s36, 3")
    e("v_mul_lo_u32 v5, v4, s46")
    e("v_lshl_add_u32 v5, v3, 4, v5")
    e("v_and_b32 v6, 3, v3")
    e("v_lshlrev_b32 v6, 10, v6")
    e("v_lshl_add_u32 v6, v4, 4, v6")
    e("s_lshl_b32 s43, s41, 1")
    e("buffer_load_dwordx4 v[8:11], v6, s[16:19], s43 offen")
    for i in range(8):
        e(f"buffer_load_dwordx4 v[{16+4*i}:{19+4*i}], v5, s[24:27], s{28+i} offen sc1 nt")
    e("s_lshl_b32 s47, s14, 2")
    e("s_mul_i32 s47, s47, s39")
    e("s_add_u32 s47, s47, s40")
    e("s_lshl_b32 s47, s47, 2")
    e("s_add_u32 s47, s47, s38")
    e("s_lshl_b32 s48, s15, 11")
    e("v_lshlrev_b32 v7, 7, v3")
    e("v_add_u32 v7, s48, v7")
    e("s_waitcnt vmcnt(0)")
    gemv_macro(8, 16, 48, 80, 44, 45)
    lds_reduce4_store(48, 7, 96, 20, 47, 39)
    L.append("K1_END:")
    e("s_endpgm")

def k2():
    kernel_begin("k2_attn_kernel")
    LDS_Q = 0
    LDS_ST = 1024
    LDS_O = 2048
    e("s_cmp_ge_u32 s2, 256")
    e("s_cbranch_scc1 K2_END")
    e("s_load_dwordx4 s[4:7], s[0:1], 8")
    e("s_load_dwordx2 s[8:9], s[0:1], 96")
    e("s_lshr_b32 s3, s2, 3")
    e("s_and_b32 s10, s2, 7")
    e("v_lshrrev_b32 v1, 6, v0")
    e("v_and_b32 v2, 63, v0")
    e("v_readfirstlane_b32 s11, v1")
    e("v_and_b32 v3, 15, v2")
    e("v_lshrrev_b32 v4, 4, v2")
    e("s_mov_b32 s44, 0x05040100")
    e("s_mov_b32 s45, 0x07060302")
    e("s_mov_b32 s46, 0x3e0293ee")
    e("s_waitcnt lgkmcnt(0)")
    srd(12, 4, 134217728)
    srd(16, 6, 134217728)
    srd(20, 8, WS_END)
    e("s_lshr_b32 s24, s3, 3")
    e("s_and_b32 s25, s3, 7")
    e("s_lshl_b32 s26, s24, 14")
    e("s_lshl_b32 s27, s25, 11")
    e("s_add_u32 s26, s26, s27")
    e(f"s_add_u32 s26, s26, {WS_QP}")
    e("v_and_b32 v5, 511, v0")
    e("v_lshlrev_b32 v5, 2, v5")
    for ks in range(4):
        if ks:
            e("s_add_u32 s26, s26, 65536")
        e(f"buffer_load_dword v{8+ks}, v5, s[20:23], s26 offen")
    e("s_lshl_b32 s28, s3, 22")
    e("s_lshl_b32 s29, s10, 17")
    e("s_add_u32 s28, s28, s29")
    e("s_lshl_b32 s29, s11, 13")
    e("s_add_u32 s28, s28, s29")
    e("s_add_u32 s28, s28, 3145728")
    e("s_add_u32 s29, s28, 4096")
    e("v_lshlrev_b32 v6, 8, v3")
    e("v_lshl_add_u32 v6, v4, 4, v6")
    e("v_lshlrev_b32 v7, 10, v4")
    e("v_lshl_add_u32 v7, v3, 4, v7")
    for blk in range(2):
        for j in range(4):
            r = 16 + 16 * blk + 4 * j
            e(f"buffer_load_dwordx4 v[{r}:{r+3}], v6, s[12:15], s{28+blk} offen offset:{64*j} sc1 nt")
    for i in range(8):
        r = 48 + 4 * i
        e(f"buffer_load_dwordx4 v[{r}:{r+3}], v7, s[16:19], s{28+(i>>2)} offen offset:{256*(i&3)} sc1 nt")
    e("s_waitcnt vmcnt(16)")
    e("v_add_f32 v8, v8, v9")
    e("v_add_f32 v10, v10, v11")
    e("v_add_f32 v8, v8, v10")
    e("v_cvt_pk_bf16_f32 v8, v8, v8")
    e("v_lshrrev_b32 v5, 1, v5")
    e(f"ds_write_b16 v5, v8 offset:{LDS_Q}")
    e("s_waitcnt lgkmcnt(0)")
    e("s_barrier")
    e("v_and_b32 v5, 3, v3")
    e("v_lshlrev_b32 v5, 8, v5")
    e("v_lshl_add_u32 v5, v4, 4, v5")
    for j in range(4):
        e(f"ds_read_b128 v[{80+4*j}:{83+4*j}], v5 offset:{LDS_Q+64*j}")
    e("s_waitcnt vmcnt(8) lgkmcnt(0)")
    for blk in range(2):
        d = 96 + 4 * blk
        for j in range(4):
            r = 16 + 16 * blk + 4 * j
            cin = "0" if j == 0 else f"v[{d}:{d+3}]"
            e(f"v_mfma_f32_16x16x32_bf16 v[{d}:{d+3}], v[{r}:{r+3}], v[{80+4*j}:{83+4*j}], {cin}")
    e("s_nop 7")
    e("v_max3_f32 v108, v96, v97, v98")
    e("v_max3_f32 v108, v108, v99, v100")
    e("v_max3_f32 v108, v108, v101, v102")
    e("v_max_f32 v108, v108, v103")
    xlane_g(108, 109, "v_max_f32")
    e("v_mul_f32 v110, s46, v108")
    e("v_sub_f32 v111, 0, v110")
    for i in range(8):
        e(f"v_fma_f32 v{96+i}, v{96+i}, s46, v111")
    for i in range(8):
        e(f"v_exp_f32 v{96+i}, v{96+i}")
    e("s_nop 0")
    e("v_add_f32 v112, v96, v97")
    e("v_add_f32 v113, v98, v99")
    e("v_add_f32 v114, v100, v101")
    e("v_add_f32 v115, v102, v103")
    e("v_add_f32 v112, v112, v113")
    e("v_add_f32 v114, v114, v115")
    e("v_add_f32 v112, v112, v114")
    xlane_g(112, 113, "v_add_f32")
    for t in range(4):
        e(f"v_cvt_pk_bf16_f32 v{104+t}, v{96+2*t}, v{97+2*t}")
    e("s_waitcnt vmcnt(0)")
    gemv_macro(104, 48, 16, 80, 44, 45)
    e("s_nop 7")
    e("s_lshl_b32 s30, s11, 11")
    e("v_lshlrev_b32 v5, 7, v3")
    e("v_add_u32 v5, s30, v5")
    e("s_mov_b64 exec, 0xffff")
    for j in range(8):
        e(f"ds_write_b128 v5, v[{16+4*j}:{19+4*j}] offset:{LDS_O+16*j}")
    e("s_mov_b64 exec, 0xf")
    e("s_lshl_b32 s30, s11, 5")
    e("v_lshlrev_b32 v5, 3, v3")
    e("v_add_u32 v5, s30, v5")
    e("v_mov_b32 v111, v112")
    e(f"ds_write_b64 v5, v[110:111] offset:{LDS_ST}")
    e("s_mov_b64 exec, -1")
    e("s_waitcnt lgkmcnt(0)")
    e("s_barrier")
    e("s_cmp_ge_u32 s11, 8")
    e("s_cbranch_scc1 K2_END")
    e("v_and_b32 v5, 3, v0")
    e("v_lshlrev_b32 v5, 3, v5")
    e("v_lshlrev_b32 v6, 2, v0")
    for w in range(16):
        e(f"ds_read_b64 v[{16+2*w}:{17+2*w}], v5 offset:{LDS_ST+32*w}")
    for w in range(16):
        e(f"ds_read_b32 v{48+w}, v6 offset:{LDS_O+2048*w}")
    e("s_waitcnt lgkmcnt(0)")
    e("v_max3_f32 v8, v16, v18, v20")
    for w in range(3, 15, 2):
        e(f"v_max3_f32 v8, v8, v{16+2*w}, v{18+2*w}")
    e("v_max_f32 v8, v8, v46")
    for w in range(16):
        e(f"v_sub_f32 v{16+2*w}, v{16+2*w}, v8")
    for w in range(16):
        e(f"v_exp_f32 v{16+2*w}, v{16+2*w}")
    e("v_mov_b32 v9, 0")
    e("v_mov_b32 v10, 0")
    for w in range(16):
        e(f"v_fmac_f32 v9, v{16+2*w}, v{17+2*w}")
        e(f"v_fmac_f32 v10, v{16+2*w}, v{48+w}")
    e("s_lshl_b32 s30, s24, 5")
    e("s_lshl_b32 s31, s25, 2")
    e("s_add_u32 s30, s30, s31")
    e("s_lshl_b32 s30, s30, 3")
    e("s_add_u32 s30, s30, s10")
    e("s_lshl_b32 s31, s30, 9")
    e(f"s_add_u32 s31, s31, {WS_OP}")
    e("v_and_b32 v11, 3, v0")
    e("v_lshlrev_b32 v12, 12, v11")
    e("v_lshrrev_b32 v13, 5, v0")
    e("v_lshlrev_b32 v13, 5, v13")
    e("v_bfe_u32 v14, v0, 2, 3")
    e("v_lshl_add_u32 v13, v14, 2, v13")
    e("v_add_u32 v12, v12, v13")
    e("buffer_store_dword v10, v12, s[20:23], s31 offen")
    e("s_cmp_lg_u32 s11, 0")
    e("s_cbranch_scc1 K2_END")
    e("s_mov_b64 exec, 0xf")
    e("s_lshl_b32 s31, s30, 3")
    e(f"s_add_u32 s31, s31, {WS_ST}")
    e("v_lshlrev_b32 v12, 6, v11")
    e("v_mov_b32 v7, v9")
    e("v_mov_b32 v6, v8")
    e("buffer_store_dwordx2 v[6:7], v12, s[20:23], s31 offen")
    L.append("K2_END:")
    e("s_endpgm")

def k3():
    kernel_begin("k3_oproj_kernel")
    LDS_A = 8192
    e("s_cmp_ge_u32 s2, 184")
    e("s_cbranch_scc1 K3_END")
    e("s_load_dwordx2 s[4:5], s[0:1], 32")
    e("s_load_dwordx2 s[6:7], s[0:1], 64")
    e("s_load_dwordx2 s[8:9], s[0:1], 96")
    e("s_lshr_b32 s3, s2, 2")
    e("s_and_b32 s10, s2, 3")
    e("v_lshrrev_b32 v1, 6, v0")
    e("v_and_b32 v2, 63, v0")
    e("v_readfirstlane_b32 s11, v1")
    e("v_and_b32 v3, 15, v2")
    e("v_lshrrev_b32 v4, 4, v2")
    e("s_mov_b32 s44, 0x05040100")
    e("s_mov_b32 s45, 0x07060302")
    e("v_lshlrev_b32 v5, 13, v4")
    e("v_lshl_add_u32 v5, v3, 4, v5")
    e("s_lshl_b32 s24, s11, 15")
    e("s_lshl_b32 s25, s10, 8")
    e("s_add_u32 s24, s24, s25")
    e("s_waitcnt lgkmcnt(0)")
    srd(20, 8, WS_END)
    e("s_cmp_ge_u32 s3, 32")
    e("s_cbranch_scc1 K3_FFN")
    srd(12, 4, 4194304)
    e("s_lshl_b32 s25, s3, 17")
    e("s_add_u32 s24, s24, s25")
    e("s_add_u32 s25, s24, 4096")
    for i in range(8):
        e(f"buffer_load_dwordx4 v[{16+4*i}:{19+4*i}], v5, s[12:15], s{24+(i>>2)} offen offset:{1024*(i&3)} sc1 nt")
    e("v_lshrrev_b32 v6, 7, v0")
    e("v_and_b32 v7, 127, v0")
    e("v_lshlrev_b32 v8, 17, v6")
    e("v_lshl_add_u32 v8, v7, 2, v8")
    e("v_add_u32 v9, 0x40000, v8")
    e("v_lshlrev_b32 v10, 11, v6")
    e("v_add_u32 v11, 0x1000, v10")
    e("s_lshl_b32 s26, s3, 12")
    e(f"s_add_u32 s26, s26, {WS_OP}")
    e("s_lshl_b32 s27, s3, 6")
    e(f"s_add_u32 s27, s27, {WS_ST}")
    for s in range(8):
        e(f"buffer_load_dword v{96+s}, v8, s[20:23], s26 offen offset:{512*s}")
        e(f"buffer_load_dword v{104+s}, v9, s[20:23], s26 offen offset:{512*s}")
        e(f"buffer_load_dwordx2 v[{112+2*s}:{113+2*s}], v10, s[20:23], s27 offen offset:{8*s}")
        e(f"buffer_load_dwordx2 v[{128+2*s}:{129+2*s}], v11, s[20:23], s27 offen offset:{8*s}")
    e("s_waitcnt vmcnt(0)")
    for el in range(2):
        ob = 96 + 8 * el
        sb = 112 + 16 * el
        e(f"v_max3_f32 v12, v{sb}, v{sb+2}, v{sb+4}")
        e(f"v_max3_f32 v12, v12, v{sb+6}, v{sb+8}")
        e(f"v_max3_f32 v12, v12, v{sb+10}, v{sb+12}")
        e(f"v_max_f32 v12, v12, v{sb+14}")
        for s in range(8):
            e(f"v_sub_f32 v{sb+2*s}, v{sb+2*s}, v12")
        for s in range(8):
            e(f"v_exp_f32 v{sb+2*s}, v{sb+2*s}")
        e("v_mov_b32 v13, 0")
        e("v_mov_b32 v14, 0")
        for s in range(8):
            e(f"v_fmac_f32 v13, v{sb+2*s}, v{sb+2*s+1}")
            e(f"v_fmac_f32 v14, v{sb+2*s}, v{ob+s}")
        e("v_rcp_f32 v13, v13")
        e("s_nop 0")
        e(f"v_mul_f32 v{80+el}, v14, v13")
    e("s_branch K3_ACT")
    L.append("K3_FFN:")
    srd(12, 6, 1835008)
    e("s_sub_u32 s3, s3, 32")
    e("s_lshl_b32 s25, s3, 17")
    e("s_add_u32 s24, s24, s25")
    e("s_add_u32 s25, s24, 4096")
    for i in range(8):
        e(f"buffer_load_dwordx4 v[{16+4*i}:{19+4*i}], v5, s[12:15], s{24+(i>>2)} offen offset:{1024*(i&3)} sc1 nt")
    e("v_lshrrev_b32 v6, 7, v0")
    e("v_and_b32 v7, 127, v0")
    e("v_mov_b32 v8, 7168")
    e("v_mul_lo_u32 v8, v6, v8")
    e("v_lshl_add_u32 v8, v7, 2, v8")
    e("v_add_u32 v9, 14336, v8")
    e("s_lshl_b32 s26, s3, 9")
    e(f"s_add_u32 s27, s26, {WS_UP}")
    e(f"s_add_u32 s26, s26, {WS_GP}")
    for ks in range(4):
        e(f"buffer_load_dword v{96+ks}, v8, s[20:23], s26 offen")
        e(f"buffer_load_dword v{100+ks}, v9, s[20:23], s26 offen")
        e(f"buffer_load_dword v{104+ks}, v8, s[20:23], s27 offen")
        e(f"buffer_load_dword v{108+ks}, v9, s[20:23], s27 offen")
        if ks < 3:
            e("s_add_u32 s26, s26, 28672")
            e("s_add_u32 s27, s27, 28672")
    e("s_waitcnt vmcnt(0)")
    for el in range(2):
        gb = 96 + 4 * el
        ub = 104 + 4 * el
        e(f"v_add_f32 v{gb}, v{gb}, v{gb+1}")
        e(f"v_add_f32 v{gb+2}, v{gb+2}, v{gb+3}")
        e(f"v_add_f32 v{gb}, v{gb}, v{gb+2}")
        e(f"v_add_f32 v{ub}, v{ub}, v{ub+1}")
        e(f"v_add_f32 v{ub+2}, v{ub+2}, v{ub+3}")
        e(f"v_add_f32 v{ub}, v{ub}, v{ub+2}")
        e(f"v_cvt_pk_bf16_f32 v12, v{gb}, v{ub}")
        e("v_lshlrev_b32 v13, 16, v12")
        e("v_and_b32 v14, 0xffff0000, v12")
        e("v_max_f32 v13, 0, v13")
        e(f"v_mul_f32 v{80+el}, v13, v14")
    L.append("K3_ACT:")
    e("v_cvt_pk_bf16_f32 v82, v80, v81")
    e("v_lshlrev_b32 v12, 8, v6")
    e("v_lshl_add_u32 v12, v7, 1, v12")
    e(f"ds_write_b16 v12, v82 offset:{LDS_A}")
    e(f"ds_write_b16_d16_hi v12, v82 offset:{LDS_A+512}")
    e("s_waitcnt lgkmcnt(0)")
    e("s_barrier")
    e("v_and_b32 v12, 3, v3")
    e("v_lshlrev_b32 v12, 8, v12")
    e("v_lshl_add_u32 v12, v4, 4, v12")
    e("s_lshl_b32 s28, s11, 6")
    e("v_add_u32 v12, s28, v12")
    e(f"ds_read_b128 v[8:11], v12 offset:{LDS_A}")
    e("s_lshr_b32 s3, s2, 2")
    e("s_lshl_b32 s47, s3, 13")
    e("s_lshl_b32 s28, s10, 9")
    e("s_add_u32 s47, s47, s28")
    e(f"s_add_u32 s47, s47, {WS_P3}")
    e("s_mov_b32 s39, 512")
    e("s_lshl_b32 s48, s11, 11")
    e("v_lshlrev_b32 v7, 7, v3")
    e("v_add_u32 v7, s48, v7")
    e("s_waitcnt lgkmcnt(0)")
    gemv_macro(8, 16, 48, 80, 44, 45)
    lds_reduce4_store(48, 7, 96, 20, 47, 39)
    L.append("K3_END:")
    e("s_endpgm")

def rne(v, tmp):
    e(f"v_cvt_pk_bf16_f32 v{tmp}, v{v}, v{v}")
    e(f"v_lshlrev_b32 v{v}, 16, v{tmp}")

def k4():
    kernel_begin("k4_final_kernel")
    e("s_cmp_ge_u32 s2, 8")
    e("s_cbranch_scc1 K4_END")
    e("s_load_dwordx2 s[4:5], s[0:1], 0")
    e("s_load_dwordx2 s[6:7], s[0:1], 72")
    e("s_load_dwordx2 s[8:9], s[0:1], 80")
    e("s_load_dwordx2 s[10:11], s[0:1], 96")
    e("s_lshl_b32 s3, s2, 8")
    e("v_add_u32 v1, s3, v0")
    e("v_and_b32 v2, 63, v0")
    e("s_waitcnt lgkmcnt(0)")
    srd(12, 4, 4096)
    srd(16, 6, 1024)
    srd(20, 8, 4096)
    srd(24, 10, WS_END)
    e("v_lshlrev_b32 v3, 2, v1")
    e(f"s_mov_b32 s28, {WS_P3}")
    for kg in range(46):
        e(f"buffer_load_dword v{16+kg}, v3, s[24:27], s28 offen")
        if kg < 45:
            e("s_add_u32 s28, s28, 8192")
    e("s_lshr_b32 s29, s2, 1")
    e("s_lshl_b32 s29, s29, 10")
    e("v_lshlrev_b32 v4, 4, v2")
    e("buffer_load_dwordx4 v[64:67], v4, s[12:15], s29 offen")
    e("buffer_load_dwordx4 v[68:71], v4, s[16:19], 0 offen")
    e("s_waitcnt vmcnt(0)")
    e("v_mov_b32 v80, 0")
    for q in range(4):
        e(f"v_lshlrev_b32 v72, 16, v{64+q}")
        e(f"v_and_b32 v73, 0xffff0000, v{64+q}")
        e(f"v_lshlrev_b32 v74, 16, v{68+q}")
        e(f"v_and_b32 v75, 0xffff0000, v{68+q}")
        e("v_mul_f32 v72, v72, v74")
        e("v_mul_f32 v73, v73, v75")
        e("v_cvt_pk_bf16_f32 v72, v72, v73")
        e("v_lshlrev_b32 v73, 16, v72")
        e("v_and_b32 v72, 0xffff0000, v72")
        e("v_add_f32 v80, v80, v73")
        e("v_add_f32 v80, v80, v72")
    for ctrl in ("quad_perm:[1,0,3,2]", "quad_perm:[2,3,0,1]", "row_half_mirror", "row_mirror"):
        e("s_nop 1")
        e(f"v_add_f32_dpp v80, v80, v80 {ctrl} row_mask:0xf bank_mask:0xf")
    xlane_g(80, 81, "v_add_f32")
    rne(80, 81)
    e("v_mul_f32 v80, 0xbfb8aa3b, v80")
    e("v_exp_f32 v80, v80")
    e("s_nop 0")
    e("v_add_f32 v80, 1.0, v80")
    e("v_rcp_f32 v80, v80")
    e("s_nop 0")
    rne(80, 81)
    e("v_add_f32 v16, v16, v17")
    for kg in range(2, 32):
        e(f"v_add_f32 v16, v16, v{16+kg}")
    e("v_add_f32 v48, v48, v49")
    for kg in range(34, 46):
        e(f"v_add_f32 v48, v48, v{16+kg}")
    rne(16, 81)
    rne(48, 81)
    e("v_mul_f32 v16, v80, v16")
    rne(16, 81)
    e("v_sub_f32 v82, 1.0, v80")
    rne(82, 81)
    e("v_mul_f32 v48, v82, v48")
    rne(48, 81)
    e("v_add_f32 v16, v16, v48")
    e("v_cvt_pk_bf16_f32 v16, v16, v16")
    e("v_lshlrev_b32 v3, 1, v1")
    e("buffer_store_short v16, v3, s[20:23], 0 offen")
    L.append("K4_END:")
    e("s_endpgm")

def descriptors():
    L.append('.section .rodata,"a"')
    for name, vg, sg in (("k1_proj_kernel", 112, 64), ("k2_attn_kernel", 120, 64), ("k3_oproj_kernel", 144, 64), ("k4_final_kernel", 96, 64)):
        L.append(".p2align 6")
        L.append(f".amdhsa_kernel {name}")
        L.append(f"  .amdhsa_next_free_vgpr {vg}")
        L.append(f"  .amdhsa_next_free_sgpr {sg}")
        L.append(f"  .amdhsa_accum_offset {vg}")
        L.append("  .amdhsa_group_segment_fixed_size 0")
        L.append("  .amdhsa_kernarg_size 104")
        L.append("  .amdhsa_user_sgpr_count 2")
        L.append("  .amdhsa_user_sgpr_kernarg_segment_ptr 1")
        L.append("  .amdhsa_system_sgpr_workgroup_id_x 1")
        L.append(".end_amdhsa_kernel")

header()
k1(); k2(); k3(); k4()
descriptors()
open(OUT, "w").write("\n".join(L) + "\n")
print("wrote", OUT, len(L), "lines")
```

```python
import sys, os

OUT = sys.argv[1] if len(sys.argv) > 1 else "gated_mix__sliding_block_cached__glu_gated_reglu__decode.s"

WS_QP = 0x000000
WS_GP = 0x100000
WS_OP = 0x200000
WS_ST = 0x280000
WS_P3 = 0x290000
WS_END = 0x300000 if os.environ.get('TS') != '1' else 0x1100000

L = []
def e(s=""):
    L.append("    " + s if s and not s.endswith(":") else s)
def c(s):
    L.append("    ; " + s)

def header():
    L.append(open("gated_mix__sliding_block_cached__glu_gated_reglu__decode.s.ref").read().split("; Override launch geometry")[0].rstrip())
    L.append("; @launch kernel=k2_attn_kernel grid=(256,1,1) block=(1024,1,1) lds=34816")
    L.append("; @launch kernel=k3_oproj_kernel grid=(184,1,1) block=(256,1,1) lds=9216")
    L.append("; @launch kernel=k4_final_kernel grid=(8,1,1) block=(256,1,1) lds=0")
    L.append('.amdgcn_target "amdgcn-amd-amdhsa--gfx950"')
    L.append(".text")

import os
TS = os.environ.get("TS") == "1"
WS_TS = 0x1000000
def ts_begin():
    if TS:
        e("s_memrealtime s[90:91]")
def ts_end(kid, srd_ws, wave_s):
    if TS:
        e("s_memrealtime s[92:93]")
        e("s_mov_b64 exec, 1")
        e(f"s_lshl_b32 s94, s2, 4")
        e(f"s_add_u32 s94, s94, s{wave_s}")
        e(f"s_add_u32 s94, s94, {kid*4096}")
        e(f"s_lshl_b32 s94, s94, 4")
        e(f"s_add_u32 s94, s94, {WS_TS}")
        e("s_waitcnt lgkmcnt(0)")
        e("v_mov_b32 v0, s90")
        e("v_mov_b32 v1, s91")
        e("v_mov_b32 v2, s92")
        e("v_mov_b32 v3, s93")
        e("v_mov_b32 v4, 0")
        e(f"buffer_store_dwordx4 v[0:3], v4, s[{srd_ws}:{srd_ws+3}], s94 offen")

def kernel_begin(name):
    L.append(f".globl {name}")
    L.append(".p2align 8")
    L.append(f".type {name},@function")
    L.append(f"{name}:")

def srd(dst, ptr, nbytes):
    e(f"s_mov_b32 s{dst}, s{ptr}")
    e(f"s_and_b32 s{dst+1}, s{ptr+1}, 0xffff")
    e(f"s_mov_b32 s{dst+2}, {nbytes}")
    e(f"s_mov_b32 s{dst+3}, 0x00020000")

def gemv_macro(a_reg, w_base, acc_base, b_base, sel_lo, sel_hi):
    def perms(j):
        q = j >> 1
        sel = sel_hi if (j & 1) else sel_lo
        bs = b_base + 4 * (j & 3)
        for t in range(4):
            x = w_base + 4 * (2 * t) + q
            y = w_base + 4 * (2 * t + 1) + q
            e(f"v_perm_b32 v{bs+t}, v{y}, v{x}, s{sel}")
    def mfma(j):
        bs = b_base + 4 * (j & 3)
        e(f"v_mfma_f32_16x16x32_bf16 v[{acc_base+4*j}:{acc_base+4*j+3}], v[{a_reg}:{a_reg+3}], v[{bs}:{bs+3}], 0")
    perms(0)
    for j in range(8):
        if j + 1 < 8:
            perms(j + 1)
        else:
            e("s_nop 1")
        mfma(j)

def lds_reduce4_store(acc_base, vaddr, vt0, srd_out, s_out_off, ostride_s):
    e("s_nop 7")
    e("s_mov_b64 exec, 0xffff")
    for j in range(8):
        e(f"ds_write_b128 v{vaddr}, v[{acc_base+4*j}:{acc_base+4*j+3}] offset:{16*j}")
    e("s_mov_b64 exec, -1")
    e("s_waitcnt lgkmcnt(0)")
    e("s_barrier")
    t = vt0
    e(f"v_lshlrev_b32 v{t}, 2, v0")
    for w in range(4):
        e(f"ds_read_b32 v{t+2+w}, v{t} offset:{2048*w}")
        e(f"ds_read_b32 v{t+6+w}, v{t} offset:{2048*w+1024}")
    e(f"v_and_b32 v{t+10}, 3, v0")
    e(f"v_mul_lo_u32 v{t+10}, v{t+10}, s{ostride_s}")
    e(f"v_lshrrev_b32 v{t+11}, 5, v0")
    e(f"v_lshlrev_b32 v{t+11}, 3, v{t+11}")
    e(f"v_bfe_u32 v{t+12}, v0, 2, 3")
    e(f"v_add3_u32 v{t+10}, v{t+10}, v{t+11}, v{t+12}")
    e(f"v_lshlrev_b32 v{t+10}, 2, v{t+10}")
    e("s_waitcnt lgkmcnt(0)")
    e(f"v_add_f32 v{t+2}, v{t+2}, v{t+3}")
    e(f"v_add_f32 v{t+4}, v{t+4}, v{t+5}")
    e(f"v_add_f32 v{t+6}, v{t+6}, v{t+7}")
    e(f"v_add_f32 v{t+8}, v{t+8}, v{t+9}")
    e(f"v_add_f32 v{t+2}, v{t+2}, v{t+4}")
    e(f"v_add_f32 v{t+6}, v{t+6}, v{t+8}")
    e(f"buffer_store_dword v{t+2}, v{t+10}, s[{srd_out}:{srd_out+3}], s{s_out_off} offen")
    e(f"buffer_store_dword v{t+6}, v{t+10}, s[{srd_out}:{srd_out+3}], s{s_out_off} offen offset:256")

def xlane_g(v, tmp, op):
    for sw in ("v_permlane16_swap_b32", "v_permlane32_swap_b32"):
        e(f"v_mov_b32 v{tmp}, v{v}")
        e("s_nop 1")
        e(f"{sw} v{v}, v{tmp}")
        e("s_nop 1")
        e(f"{op} v{v}, v{v}, v{tmp}")

def k1():
    kernel_begin("k1_proj_kernel")
    ts_begin()
    e("s_cmp_ge_u32 s2, 240")
    e("s_cbranch_scc1 K1_EXIT")
    e("s_load_dwordx2 s[4:5], s[0:1], 0")
    e("s_load_dwordx2 s[6:7], s[0:1], 24")
    e("s_load_dwordx2 s[8:9], s[0:1], 48")
    e("s_load_dwordx2 s[10:11], s[0:1], 56")
    e("s_load_dwordx2 s[12:13], s[0:1], 96")
    e("s_lshr_b32 s3, s2, 2")
    e("s_and_b32 s14, s2, 3")
    e("v_lshrrev_b32 v1, 6, v0")
    e("v_and_b32 v2, 63, v0")
    e("v_readfirstlane_b32 s15, v1")
    e("v_and_b32 v3, 15, v2")
    e("v_lshrrev_b32 v4, 4, v2")
    e("s_mov_b32 s44, 0x05040100")
    e("s_mov_b32 s45, 0x07060302")
    e("s_waitcnt lgkmcnt(0)")
    srd(16, 4, 4096)
    srd(20, 12, WS_END)
    e("s_cmp_ge_u32 s3, 32")
    e("s_cbranch_scc1 K1_NOTQ")
    srd(24, 6, 4194304)
    e("s_mov_b32 s36, 8192")
    e("s_lshl_b32 s37, s3, 8")
    e(f"s_mov_b32 s38, {WS_QP}")
    e("s_mov_b32 s39, 4096")
    e("s_lshl_b32 s40, s3, 7")
    e("s_branch K1_COMMON")
    L.append("K1_NOTQ:")
    e("s_cmp_ge_u32 s3, 46")
    e("s_cbranch_scc1 K1_UP")
    srd(24, 8, 1835008)
    e("s_sub_u32 s3, s3, 32")
    e(f"s_mov_b32 s38, {WS_GP}")
    e("s_branch K1_FF")
    L.append("K1_UP:")
    srd(24, 10, 1835008)
    e("s_sub_u32 s3, s3, 46")
    e(f"s_mov_b32 s38, {WS_UP}")
    L.append("K1_FF:")
    e("s_mov_b32 s36, 3584")
    e("s_lshl_b32 s37, s3, 8")
    e("s_mov_b32 s39, 1792")
    e("s_lshl_b32 s40, s3, 7")
    L.append("K1_COMMON:")
    e("s_lshl_b32 s41, s14, 7")
    e("s_lshl_b32 s42, s15, 5")
    e("s_add_u32 s41, s41, s42")
    e("s_mul_i32 s28, s41, s36")
    e("s_add_u32 s28, s28, s37")
    for i in range(1, 8):
        e(f"s_add_u32 s{28+i}, s{27+i}, s36")
    e("s_lshl_b32 s46, s36, 3")
    e("v_mul_lo_u32 v5, v4, s46")
    e("v_lshl_add_u32 v5, v3, 4, v5")
    e("v_and_b32 v6, 3, v3")
    e("v_lshlrev_b32 v6, 10, v6")
    e("v_lshl_add_u32 v6, v4, 4, v6")
    e("s_lshl_b32 s43, s41, 1")
    e("buffer_load_dwordx4 v[8:11], v6, s[16:19], s43 offen")
    for i in range(8):
        e(f"buffer_load_dwordx4 v[{16+4*i}:{19+4*i}], v5, s[24:27], s{28+i} offen sc1 nt")
    e("s_lshl_b32 s47, s14, 2")
    e("s_mul_i32 s47, s47, s39")
    e("s_add_u32 s47, s47, s40")
    e("s_lshl_b32 s47, s47, 2")
    e("s_add_u32 s47, s47, s38")
    e("s_lshl_b32 s48, s15, 11")
    e("v_lshlrev_b32 v7, 7, v3")
    e("v_add_u32 v7, s48, v7")
    e("s_waitcnt vmcnt(0)")
    gemv_macro(8, 16, 48, 80, 44, 45)
    lds_reduce4_store(48, 7, 96, 20, 47, 39)
    L.append("K1_END:")
    ts_end(0, 20, 15)
    L.append("K1_EXIT:")
    e("s_endpgm")

def k2():
    kernel_begin("k2_attn_kernel")
    LDS_Q = 0
    LDS_ST = 1024
    LDS_O = 2048
    ts_begin()
    e("s_cmp_ge_u32 s2, 256")
    e("s_cbranch_scc1 K2_EXIT")
    e("s_load_dwordx4 s[4:7], s[0:1], 8")
    e("s_load_dwordx2 s[8:9], s[0:1], 96")
    e("s_lshr_b32 s3, s2, 3")
    e("s_and_b32 s10, s2, 7")
    e("v_lshrrev_b32 v1, 6, v0")
    e("v_and_b32 v2, 63, v0")
    e("v_readfirstlane_b32 s11, v1")
    e("v_and_b32 v3, 15, v2")
    e("v_lshrrev_b32 v4, 4, v2")
    e("s_mov_b32 s44, 0x05040100")
    e("s_mov_b32 s45, 0x07060302")
    e("s_mov_b32 s46, 0x3e0293ee")
    e("s_waitcnt lgkmcnt(0)")
    srd(12, 4, 134217728)
    srd(16, 6, 134217728)
    srd(20, 8, WS_END)
    e("s_lshr_b32 s24, s3, 3")
    e("s_and_b32 s25, s3, 7")
    e("s_cmp_ge_u32 s11, 4")
    e("s_cbranch_scc1 KA_KV")
    e("s_load_dwordx2 s[48:49], s[0:1], 0")
    e("s_load_dwordx2 s[50:51], s[0:1], 24")
    e("s_load_dwordx4 s[52:55], s[0:1], 48")
    e("s_load_dwordx2 s[56:57], s[0:1], 88")
    e("s_waitcnt lgkmcnt(0)")
    srd(60, 48, 4096)
    srd(64, 56, 256)
    e("s_and_b32 s26, s11, 1")
    e("s_cmp_ge_u32 s11, 2")
    e("s_cbranch_scc1 KA_FFN")
    e("s_lshl_b32 s27, s24, 3")
    e("s_add_u32 s27, s27, s10")
    e("s_lshl_b32 s27, s27, 1")
    e("s_add_u32 s27, s27, s26")
    e("s_lshr_b32 s28, s27, 4")
    e("s_and_b32 s29, s27, 15")
    e("s_lshl_b32 s30, s25, 2")
    e("s_add_u32 s28, s28, s30")
    srd(68, 50, 4194304)
    e("s_mov_b32 s31, 8192")
    e("s_lshl_b32 s32, s28, 8")
    e("s_lshl_b32 s33, s29, 5")
    e("s_add_u32 s33, s33, s28")
    e("s_lshl_b32 s33, s33, 11")
    e(f"s_add_u32 s33, s33, {WS_QP}")
    e("s_branch KA_TASK")
    L.append("KA_FFN:")
    e("s_lshl_b32 s27, s2, 1")
    e("s_add_u32 s27, s27, s26")
    e("s_cmp_ge_u32 s27, 448")
    e("s_cbranch_scc1 KA_POLL")
    e("s_cmp_ge_u32 s27, 224")
    e("s_cbranch_scc1 KA_UP")
    srd(68, 52, 1835008)
    e(f"s_mov_b32 s34, {WS_GP}")
    e("s_branch KA_FF2")
    L.append("KA_UP:")
    srd(68, 54, 1835008)
    e("s_sub_u32 s27, s27, 224")
    e(f"s_mov_b32 s34, {WS_GP + 16*14*2048}")
    L.append("KA_FF2:")
    e("s_lshr_b32 s28, s27, 4")
    e("s_and_b32 s29, s27, 15")
    e("s_mov_b32 s31, 3584")
    e("s_lshl_b32 s32, s28, 8")
    e("s_mul_i32 s33, s29, 14")
    e("s_add_u32 s33, s33, s28")
    e("s_lshl_b32 s33, s33, 11")
    e("s_add_u32 s33, s33, s34")
    L.append("KA_TASK:")
    e("s_lshl_b32 s35, s29, 5")
    e("s_mul_i32 s72, s35, s31")
    e("s_add_u32 s72, s72, s32")
    for i in range(1, 8):
        e(f"s_add_u32 s{72+i}, s{71+i}, s31")
    e("s_lshl_b32 s36, s31, 3")
    e("v_mul_lo_u32 v5, v4, s36")
    e("v_lshl_add_u32 v5, v3, 4, v5")
    e("v_and_b32 v6, 3, v3")
    e("v_lshlrev_b32 v6, 10, v6")
    e("v_lshl_add_u32 v6, v4, 4, v6")
    e("s_lshl_b32 s37, s35, 1")
    e("buffer_load_dwordx4 v[8:11], v6, s[60:63], s37 offen")
    for i in range(8):
        e(f"buffer_load_dwordx4 v[{16+4*i}:{19+4*i}], v5, s[68:71], s{72+i} offen sc1 nt")
    e("s_waitcnt vmcnt(0)")
    gemv_macro(8, 16, 48, 80, 44, 45)
    e("s_nop 7")
    e("v_lshlrev_b32 v5, 7, v3")
    e("s_mov_b64 exec, 0xffff")
    for j in range(8):
        e(f"buffer_store_dwordx4 v[{48+4*j}:{51+4*j}], v5, s[20:23], s33 offen offset:{16*j} sc1")
    e("s_mov_b64 exec, -1")
    e("s_waitcnt vmcnt(0)")
    e("s_cmp_ge_u32 s11, 2")
    e("s_cbranch_scc1 KA_POLL")
    e("s_mov_b64 exec, 1")
    e("v_mov_b32 v5, 1")
    e("s_lshl_b32 s38, s25, 5")
    e("v_mov_b32 v6, s38")
    e("buffer_atomic_add v5, v6, s[64:67], 0 offen sc1")
    e("s_mov_b64 exec, -1")
    L.append("KA_POLL:")
    e("s_lshl_b32 s38, s25, 5")
    e("v_mov_b32 v6, s38")
    e("s_mov_b32 s39, 0")
    L.append("KA_POLL_LOOP:")
    e("buffer_load_dword v5, v6, s[64:67], 0 offen sc1")
    e("s_waitcnt vmcnt(0)")
    e("v_readfirstlane_b32 s38, v5")
    e("s_cmp_ge_u32 s38, 64")
    e("s_cbranch_scc1 KA_GATHER")
    e("s_sleep 4")
    e("s_add_u32 s39, s39, 1")
    e("s_cmp_lt_u32 s39, 200000")
    e("s_cbranch_scc1 KA_POLL_LOOP")
    L.append("KA_GATHER:")
    e("v_lshrrev_b32 v5, 7, v0")
    e("v_lshlrev_b32 v5, 11, v5")
    e("v_and_b32 v6, 127, v0")
    e("v_lshrrev_b32 v7, 3, v6")
    e("v_lshlrev_b32 v7, 7, v7")
    e("v_and_b32 v6, 7, v6")
    e("v_lshl_add_u32 v7, v6, 4, v7")
    e("v_add_u32 v5, v5, v7")
    e("s_lshl_b32 s38, s24, 2")
    e("s_lshl_b32 s39, s25, 13")
    e("s_add_u32 s38, s38, s39")
    e(f"s_add_u32 s38, s38, {WS_QP}")
    for ks in range(16):
        e(f"buffer_load_dword v{16+ks}, v5, s[20:23], s38 offen sc1")
        e(f"buffer_load_dword v{32+ks}, v5, s[20:23], s38 offen offset:4096 sc1") if False else None
        e("s_add_u32 s39, s38, 4096")
        e(f"buffer_load_dword v{32+ks}, v5, s[20:23], s39 offen sc1")
        if ks < 15:
            e("s_add_u32 s38, s38, 65536")
    e("s_waitcnt vmcnt(0)")
    for base in (16, 32):
        for st in (1, 2, 4, 8):
            for i in range(0, 16, 2 * st):
                e(f"v_add_f32 v{base+i}, v{base+i}, v{base+i+st}")
    e("v_cvt_pk_bf16_f32 v16, v16, v32")
    e("v_lshlrev_b32 v5, 1, v0")
    e(f"ds_write_b16 v5, v16 offset:{LDS_Q}")
    e(f"ds_write_b16_d16_hi v5, v16 offset:{LDS_Q+512}")
    L.append("KA_KV:")
    e("s_lshl_b32 s28, s3, 22")
    e("s_lshl_b32 s29, s10, 17")
    e("s_add_u32 s28, s28, s29")
    e("s_lshl_b32 s29, s11, 13")
    e("s_add_u32 s28, s28, s29")
    e("s_add_u32 s28, s28, 3145728")
    e("s_add_u32 s29, s28, 4096")
    e("v_lshlrev_b32 v6, 8, v3")
    e("v_lshl_add_u32 v6, v4, 4, v6")
    e("v_lshlrev_b32 v7, 10, v4")
    e("v_lshl_add_u32 v7, v3, 4, v7")
    for blk in range(2):
        for j in range(4):
            r = 16 + 16 * blk + 4 * j
            e(f"buffer_load_dwordx4 v[{r}:{r+3}], v6, s[12:15], s{28+blk} offen offset:{64*j} sc1 nt")
    for i in range(8):
        r = 48 + 4 * i
        e(f"buffer_load_dwordx4 v[{r}:{r+3}], v7, s[16:19], s{28+(i>>2)} offen offset:{256*(i&3)} sc1 nt")
    e("s_waitcnt lgkmcnt(0)")
    e("s_barrier")
    e("v_and_b32 v5, 3, v3")
    e("v_lshlrev_b32 v5, 8, v5")
    e("v_lshl_add_u32 v5, v4, 4, v5")
    for j in range(4):
        e(f"ds_read_b128 v[{80+4*j}:{83+4*j}], v5 offset:{LDS_Q+64*j}")
    e("s_waitcnt vmcnt(8) lgkmcnt(0)")
    for blk in range(2):
        d = 96 + 4 * blk
        for j in range(4):
            r = 16 + 16 * blk + 4 * j
            cin = "0" if j == 0 else f"v[{d}:{d+3}]"
            e(f"v_mfma_f32_16x16x32_bf16 v[{d}:{d+3}], v[{r}:{r+3}], v[{80+4*j}:{83+4*j}], {cin}")
    e("s_nop 7")
    e("v_max3_f32 v108, v96, v97, v98")
    e("v_max3_f32 v108, v108, v99, v100")
    e("v_max3_f32 v108, v108, v101, v102")
    e("v_max_f32 v108, v108, v103")
    xlane_g(108, 109, "v_max_f32")
    e("v_mul_f32 v110, s46, v108")
    e("v_sub_f32 v111, 0, v110")
    for i in range(8):
        e(f"v_fma_f32 v{96+i}, v{96+i}, s46, v111")
    for i in range(8):
        e(f"v_exp_f32 v{96+i}, v{96+i}")
    e("s_nop 0")
    e("v_add_f32 v112, v96, v97")
    e("v_add_f32 v113, v98, v99")
    e("v_add_f32 v114, v100, v101")
    e("v_add_f32 v115, v102, v103")
    e("v_add_f32 v112, v112, v113")
    e("v_add_f32 v114, v114, v115")
    e("v_add_f32 v112, v112, v114")
    xlane_g(112, 113, "v_add_f32")
    for t in range(4):
        e(f"v_cvt_pk_bf16_f32 v{104+t}, v{96+2*t}, v{97+2*t}")
    e("s_waitcnt vmcnt(0)")
    gemv_macro(104, 48, 16, 80, 44, 45)
    e("s_nop 7")
    e("s_lshl_b32 s30, s11, 11")
    e("v_lshlrev_b32 v5, 7, v3")
    e("v_add_u32 v5, s30, v5")
    e("s_mov_b64 exec, 0xffff")
    for j in range(8):
        e(f"ds_write_b128 v5, v[{16+4*j}:{19+4*j}] offset:{LDS_O+16*j}")
    e("s_mov_b64 exec, 0xf")
    e("s_lshl_b32 s30, s11, 5")
    e("v_lshlrev_b32 v5, 3, v3")
    e("v_add_u32 v5, s30, v5")
    e("v_mov_b32 v111, v112")
    e(f"ds_write_b64 v5, v[110:111] offset:{LDS_ST}")
    e("s_mov_b64 exec, -1")
    e("s_waitcnt lgkmcnt(0)")
    e("s_barrier")
    e("s_cmp_ge_u32 s11, 8")
    e("s_cbranch_scc1 K2_END")
    e("v_and_b32 v5, 3, v0")
    e("v_lshlrev_b32 v5, 3, v5")
    e("v_lshlrev_b32 v6, 2, v0")
    for w in range(16):
        e(f"ds_read_b64 v[{16+2*w}:{17+2*w}], v5 offset:{LDS_ST+32*w}")
    for w in range(16):
        e(f"ds_read_b32 v{48+w}, v6 offset:{LDS_O+2048*w}")
    e("s_waitcnt lgkmcnt(0)")
    e("v_max3_f32 v8, v16, v18, v20")
    for w in range(3, 15, 2):
        e(f"v_max3_f32 v8, v8, v{16+2*w}, v{18+2*w}")
    e("v_max_f32 v8, v8, v46")
    for w in range(16):
        e(f"v_sub_f32 v{16+2*w}, v{16+2*w}, v8")
    for w in range(16):
        e(f"v_exp_f32 v{16+2*w}, v{16+2*w}")
    e("v_mov_b32 v9, 0")
    e("v_mov_b32 v10, 0")
    for w in range(16):
        e(f"v_fmac_f32 v9, v{16+2*w}, v{17+2*w}")
        e(f"v_fmac_f32 v10, v{16+2*w}, v{48+w}")
    e("s_lshl_b32 s30, s24, 5")
    e("s_lshl_b32 s31, s25, 2")
    e("s_add_u32 s30, s30, s31")
    e("s_lshl_b32 s30, s30, 3")
    e("s_add_u32 s30, s30, s10")
    e("s_lshl_b32 s31, s30, 9")
    e(f"s_add_u32 s31, s31, {WS_OP}")
    e("v_and_b32 v11, 3, v0")
    e("v_lshlrev_b32 v12, 12, v11")
    e("v_lshrrev_b32 v13, 5, v0")
    e("v_lshlrev_b32 v13, 5, v13")
    e("v_bfe_u32 v14, v0, 2, 3")
    e("v_lshl_add_u32 v13, v14, 2, v13")
    e("v_add_u32 v12, v12, v13")
    e("buffer_store_dword v10, v12, s[20:23], s31 offen")
    e("s_cmp_lg_u32 s11, 0")
    e("s_cbranch_scc1 K2_END")
    e("s_mov_b64 exec, 0xf")
    e("s_lshl_b32 s31, s30, 3")
    e(f"s_add_u32 s31, s31, {WS_ST}")
    e("v_lshlrev_b32 v12, 6, v11")
    e("v_mov_b32 v7, v9")
    e("v_mov_b32 v6, v8")
    e("buffer_store_dwordx2 v[6:7], v12, s[20:23], s31 offen")
    L.append("K2_END:")
    ts_end(1, 20, 11)
    L.append("K2_EXIT:")
    e("s_endpgm")

def k3():
    kernel_begin("k3_oproj_kernel")
    LDS_A = 8192
    ts_begin()
    e("s_cmp_ge_u32 s2, 184")
    e("s_cbranch_scc1 K3_EXIT")
    e("s_load_dwordx2 s[4:5], s[0:1], 32")
    e("s_load_dwordx2 s[6:7], s[0:1], 64")
    e("s_load_dwordx2 s[8:9], s[0:1], 96")
    e("s_lshr_b32 s3, s2, 2")
    e("s_and_b32 s10, s2, 3")
    e("v_lshrrev_b32 v1, 6, v0")
    e("v_and_b32 v2, 63, v0")
    e("v_readfirstlane_b32 s11, v1")
    e("v_and_b32 v3, 15, v2")
    e("v_lshrrev_b32 v4, 4, v2")
    e("s_mov_b32 s44, 0x05040100")
    e("s_mov_b32 s45, 0x07060302")
    e("v_lshlrev_b32 v5, 13, v4")
    e("v_lshl_add_u32 v5, v3, 4, v5")
    e("s_lshl_b32 s24, s11, 15")
    e("s_lshl_b32 s25, s10, 8")
    e("s_add_u32 s24, s24, s25")
    e("s_waitcnt lgkmcnt(0)")
    srd(20, 8, WS_END)
    e("s_cmp_ge_u32 s3, 32")
    e("s_cbranch_scc1 K3_FFN")
    srd(12, 4, 4194304)
    e("s_lshl_b32 s25, s3, 17")
    e("s_add_u32 s24, s24, s25")
    e("s_add_u32 s25, s24, 4096")
    for i in range(8):
        e(f"buffer_load_dwordx4 v[{16+4*i}:{19+4*i}], v5, s[12:15], s{24+(i>>2)} offen offset:{1024*(i&3)} sc1 nt")
    e("v_lshrrev_b32 v6, 7, v0")
    e("v_and_b32 v7, 127, v0")
    e("v_lshlrev_b32 v8, 17, v6")
    e("v_lshl_add_u32 v8, v7, 2, v8")
    e("v_add_u32 v9, 0x40000, v8")
    e("v_lshlrev_b32 v10, 11, v6")
    e("v_add_u32 v11, 0x1000, v10")
    e("s_lshl_b32 s26, s3, 12")
    e(f"s_add_u32 s26, s26, {WS_OP}")
    e("s_lshl_b32 s27, s3, 6")
    e(f"s_add_u32 s27, s27, {WS_ST}")
    for s in range(8):
        e(f"buffer_load_dword v{96+s}, v8, s[20:23], s26 offen offset:{512*s}")
        e(f"buffer_load_dword v{104+s}, v9, s[20:23], s26 offen offset:{512*s}")
        e(f"buffer_load_dwordx2 v[{112+2*s}:{113+2*s}], v10, s[20:23], s27 offen offset:{8*s}")
        e(f"buffer_load_dwordx2 v[{128+2*s}:{129+2*s}], v11, s[20:23], s27 offen offset:{8*s}")
    e("s_waitcnt vmcnt(0)")
    for el in range(2):
        ob = 96 + 8 * el
        sb = 112 + 16 * el
        e(f"v_max3_f32 v12, v{sb}, v{sb+2}, v{sb+4}")
        e(f"v_max3_f32 v12, v12, v{sb+6}, v{sb+8}")
        e(f"v_max3_f32 v12, v12, v{sb+10}, v{sb+12}")
        e(f"v_max_f32 v12, v12, v{sb+14}")
        for s in range(8):
            e(f"v_sub_f32 v{sb+2*s}, v{sb+2*s}, v12")
        for s in range(8):
            e(f"v_exp_f32 v{sb+2*s}, v{sb+2*s}")
        e("v_mov_b32 v13, 0")
        e("v_mov_b32 v14, 0")
        for s in range(8):
            e(f"v_fmac_f32 v13, v{sb+2*s}, v{sb+2*s+1}")
            e(f"v_fmac_f32 v14, v{sb+2*s}, v{ob+s}")
        e("v_rcp_f32 v13, v13")
        e("s_nop 0")
        e(f"v_mul_f32 v{80+el}, v14, v13")
    e("s_branch K3_ACT")
    L.append("K3_FFN:")
    srd(12, 6, 1835008)
    e("s_sub_u32 s3, s3, 32")
    e("s_lshl_b32 s25, s3, 17")
    e("s_add_u32 s24, s24, s25")
    e("s_add_u32 s25, s24, 4096")
    for i in range(8):
        e(f"buffer_load_dwordx4 v[{16+4*i}:{19+4*i}], v5, s[12:15], s{24+(i>>2)} offen offset:{1024*(i&3)} sc1 nt")
    e("v_lshrrev_b32 v6, 7, v0")
    e("v_and_b32 v7, 127, v0")
    e("v_lshrrev_b32 v8, 3, v7")
    e("v_lshlrev_b32 v8, 7, v8")
    e("v_and_b32 v9, 7, v7")
    e("v_lshl_add_u32 v8, v9, 4, v8")
    e("v_lshl_add_u32 v8, v6, 2, v8")
    e("s_lshl_b32 s26, s3, 11")
    e(f"s_add_u32 s26, s26, {WS_GP}")
    e(f"s_add_u32 s27, s26, {16*14*2048}")
    for ks in range(16):
        e(f"buffer_load_dword v{96+ks}, v8, s[20:23], s26 offen")
        e(f"buffer_load_dword v{112+ks}, v8, s[20:23], s26 offen offset:8")
        e(f"buffer_load_dword v{128+ks}, v8, s[20:23], s27 offen")
        e(f"buffer_load_dword v{144+ks}, v8, s[20:23], s27 offen offset:8")
        if ks < 15:
            e("s_add_u32 s26, s26, 28672")
            e("s_add_u32 s27, s27, 28672")
    e("s_waitcnt vmcnt(0)")
    for base in (96, 112, 128, 144):
        for st in (1, 2, 4, 8):
            for i in range(0, 16, 2 * st):
                e(f"v_add_f32 v{base+i}, v{base+i}, v{base+i+st}")
    for el in range(2):
        gb = 96 + 16 * el
        ub = 128 + 16 * el
        e(f"v_cvt_pk_bf16_f32 v12, v{gb}, v{ub}")
        e("v_lshlrev_b32 v13, 16, v12")
        e("v_and_b32 v14, 0xffff0000, v12")
        e("v_max_f32 v13, 0, v13")
        e(f"v_mul_f32 v{80+el}, v13, v14")
    L.append("K3_ACT:")
    e("v_cvt_pk_bf16_f32 v82, v80, v81")
    e("v_lshlrev_b32 v12, 8, v6")
    e("v_lshl_add_u32 v12, v7, 1, v12")
    e(f"ds_write_b16 v12, v82 offset:{LDS_A}")
    e(f"ds_write_b16_d16_hi v12, v82 offset:{LDS_A+512}")
    e("s_waitcnt lgkmcnt(0)")
    e("s_barrier")
    e("v_and_b32 v12, 3, v3")
    e("v_lshlrev_b32 v12, 8, v12")
    e("v_lshl_add_u32 v12, v4, 4, v12")
    e("s_lshl_b32 s28, s11, 6")
    e("v_add_u32 v12, s28, v12")
    e(f"ds_read_b128 v[8:11], v12 offset:{LDS_A}")
    e("s_lshr_b32 s3, s2, 2")
    e("s_lshl_b32 s47, s3, 13")
    e("s_lshl_b32 s28, s10, 9")
    e("s_add_u32 s47, s47, s28")
    e(f"s_add_u32 s47, s47, {WS_P3}")
    e("s_mov_b32 s39, 512")
    e("s_lshl_b32 s48, s11, 11")
    e("v_lshlrev_b32 v7, 7, v3")
    e("v_add_u32 v7, s48, v7")
    e("s_waitcnt lgkmcnt(0)")
    gemv_macro(8, 16, 48, 80, 44, 45)
    lds_reduce4_store(48, 7, 96, 20, 47, 39)
    L.append("K3_END:")
    ts_end(2, 20, 11)
    L.append("K3_EXIT:")
    e("s_endpgm")

def rne(v, tmp):
    e(f"v_cvt_pk_bf16_f32 v{tmp}, v{v}, v{v}")
    e(f"v_lshlrev_b32 v{v}, 16, v{tmp}")

def k4():
    kernel_begin("k4_final_kernel")
    ts_begin()
    e("s_cmp_ge_u32 s2, 8")
    e("s_cbranch_scc1 K4_EXIT")
    e("s_load_dwordx2 s[4:5], s[0:1], 0")
    e("s_load_dwordx2 s[6:7], s[0:1], 72")
    e("s_load_dwordx2 s[8:9], s[0:1], 80")
    e("s_load_dwordx2 s[10:11], s[0:1], 96")
    e("s_lshl_b32 s3, s2, 8")
    e("v_add_u32 v1, s3, v0")
    e("v_and_b32 v2, 63, v0")
    e("s_waitcnt lgkmcnt(0)")
    srd(12, 4, 4096)
    srd(16, 6, 1024)
    srd(20, 8, 4096)
    srd(24, 10, WS_END)
    e("v_lshlrev_b32 v3, 2, v1")
    e(f"s_mov_b32 s28, {WS_P3}")
    for kg in range(46):
        e(f"buffer_load_dword v{16+kg}, v3, s[24:27], s28 offen")
        if kg < 45:
            e("s_add_u32 s28, s28, 8192")
    e("s_lshr_b32 s29, s2, 1")
    e("s_lshl_b32 s29, s29, 10")
    e("v_lshlrev_b32 v4, 4, v2")
    e("buffer_load_dwordx4 v[64:67], v4, s[12:15], s29 offen")
    e("buffer_load_dwordx4 v[68:71], v4, s[16:19], 0 offen")
    e("s_waitcnt vmcnt(0)")
    e("v_mov_b32 v80, 0")
    for q in range(4):
        e(f"v_lshlrev_b32 v72, 16, v{64+q}")
        e(f"v_and_b32 v73, 0xffff0000, v{64+q}")
        e(f"v_lshlrev_b32 v74, 16, v{68+q}")
        e(f"v_and_b32 v75, 0xffff0000, v{68+q}")
        e("v_mul_f32 v72, v72, v74")
        e("v_mul_f32 v73, v73, v75")
        e("v_cvt_pk_bf16_f32 v72, v72, v73")
        e("v_lshlrev_b32 v73, 16, v72")
        e("v_and_b32 v72, 0xffff0000, v72")
        e("v_add_f32 v80, v80, v73")
        e("v_add_f32 v80, v80, v72")
    for ctrl in ("quad_perm:[1,0,3,2]", "quad_perm:[2,3,0,1]", "row_half_mirror", "row_mirror"):
        e("s_nop 1")
        e(f"v_add_f32_dpp v80, v80, v80 {ctrl} row_mask:0xf bank_mask:0xf")
    xlane_g(80, 81, "v_add_f32")
    rne(80, 81)
    e("v_mul_f32 v80, 0xbfb8aa3b, v80")
    e("v_exp_f32 v80, v80")
    e("s_nop 0")
    e("v_add_f32 v80, 1.0, v80")
    e("v_rcp_f32 v80, v80")
    e("s_nop 0")
    rne(80, 81)
    e("v_add_f32 v16, v16, v17")
    for kg in range(2, 32):
        e(f"v_add_f32 v16, v16, v{16+kg}")
    e("v_add_f32 v48, v48, v49")
    for kg in range(34, 46):
        e(f"v_add_f32 v48, v48, v{16+kg}")
    rne(16, 81)
    rne(48, 81)
    e("v_mul_f32 v16, v80, v16")
    rne(16, 81)
    e("v_sub_f32 v82, 1.0, v80")
    rne(82, 81)
    e("v_mul_f32 v48, v82, v48")
    rne(48, 81)
    e("v_add_f32 v16, v16, v48")
    e("v_cvt_pk_bf16_f32 v16, v16, v16")
    e("v_lshlrev_b32 v3, 1, v1")
    e("buffer_store_short v16, v3, s[20:23], 0 offen")
    L.append("K4_END:")
    if TS:
        e("v_lshrrev_b32 v1, 6, v0")
        e("s_nop 0")
        e("v_readfirstlane_b32 s30, v1")
    ts_end(3, 24, 30)
    L.append("K4_EXIT:")
    e("s_endpgm")

def descriptors():
    L.append('.section .rodata,"a"')
    for name, vg, sg in (("k2_attn_kernel", 120, 96), ("k3_oproj_kernel", 160, 96), ("k4_final_kernel", 96, 96)):
        L.append(".p2align 6")
        L.append(f".amdhsa_kernel {name}")
        L.append(f"  .amdhsa_next_free_vgpr {vg}")
        L.append(f"  .amdhsa_next_free_sgpr {sg}")
        L.append(f"  .amdhsa_accum_offset {vg}")
        L.append("  .amdhsa_group_segment_fixed_size 0")
        L.append("  .amdhsa_kernarg_size 104")
        L.append("  .amdhsa_user_sgpr_count 2")
        L.append("  .amdhsa_user_sgpr_kernarg_segment_ptr 1")
        L.append("  .amdhsa_system_sgpr_workgroup_id_x 1")
        L.append(".end_amdhsa_kernel")

header()
k2(); k3(); k4()
descriptors()
open(OUT, "w").write("\n".join(L) + "\n")
print("wrote", OUT, len(L), "lines")
```

```python
import sys, os

OUT = sys.argv[1] if len(sys.argv) > 1 else "gated_mix__sliding_block_cached__glu_gated_reglu__decode.s"

WS_QP = 0x000000
WS_GP = 0x040000
WS_UP = 0x060000
WS_OP = 0x080000
WS_ST = 0x100000
WS_P3 = 0x110000
WS_END = 0x170000 if os.environ.get('TS') != '1' else 0x1100000

L = []
def e(s=""):
    L.append("    " + s if s and not s.endswith(":") else s)
def c(s):
    L.append("    ; " + s)

def header():
    L.append(open("gated_mix__sliding_block_cached__glu_gated_reglu__decode.s.ref").read().split("; Override launch geometry")[0].rstrip())
    L.append("; @launch kernel=k1_proj_kernel grid=(240,1,1) block=(256,1,1) lds=8192")
    L.append("; @launch kernel=k2_attn_kernel grid=(256,1,1) block=(1024,1,1) lds=34816")
    L.append("; @launch kernel=k3_oproj_kernel grid=(184,1,1) block=(256,1,1) lds=9216")
    L.append("; @launch kernel=k4_final_kernel grid=(8,1,1) block=(256,1,1) lds=0")
    L.append('.amdgcn_target "amdgcn-amd-amdhsa--gfx950"')
    L.append(".text")

import os
TS = os.environ.get("TS") == "1"
WS_TS = 0x1000000
def ts_begin():
    if TS:
        e("s_memrealtime s[90:91]")
def ts_end(kid, srd_ws, wave_s):
    if TS:
        e("s_memrealtime s[92:93]")
        e("s_mov_b64 exec, 1")
        e(f"s_lshl_b32 s94, s2, 4")
        e(f"s_add_u32 s94, s94, s{wave_s}")
        e(f"s_add_u32 s94, s94, {kid*4096}")
        e(f"s_lshl_b32 s94, s94, 4")
        e(f"s_add_u32 s94, s94, {WS_TS}")
        e("s_waitcnt lgkmcnt(0)")
        e("v_mov_b32 v0, s90")
        e("v_mov_b32 v1, s91")
        e("v_mov_b32 v2, s92")
        e("v_mov_b32 v3, s93")
        e("v_mov_b32 v4, 0")
        e(f"buffer_store_dwordx4 v[0:3], v4, s[{srd_ws}:{srd_ws+3}], s94 offen")

def kernel_begin(name):
    L.append(f".globl {name}")
    L.append(".p2align 8")
    L.append(f".type {name},@function")
    L.append(f"{name}:")

def srd(dst, ptr, nbytes):
    e(f"s_mov_b32 s{dst}, s{ptr}")
    e(f"s_and_b32 s{dst+1}, s{ptr+1}, 0xffff")
    e(f"s_mov_b32 s{dst+2}, {nbytes}")
    e(f"s_mov_b32 s{dst+3}, 0x00020000")

def gemv_macro(a_reg, w_base, acc_base, b_base, sel_lo, sel_hi):
    def perms(j):
        q = j >> 1
        sel = sel_hi if (j & 1) else sel_lo
        bs = b_base + 4 * (j & 3)
        for t in range(4):
            x = w_base + 4 * (2 * t) + q
            y = w_base + 4 * (2 * t + 1) + q
            e(f"v_perm_b32 v{bs+t}, v{y}, v{x}, s{sel}")
    def mfma(j):
        bs = b_base + 4 * (j & 3)
        e(f"v_mfma_f32_16x16x32_bf16 v[{acc_base+4*j}:{acc_base+4*j+3}], v[{a_reg}:{a_reg+3}], v[{bs}:{bs+3}], 0")
    perms(0)
    for j in range(8):
        if j + 1 < 8:
            perms(j + 1)
        else:
            e("s_nop 1")
        mfma(j)

def lds_reduce4_store(acc_base, vaddr, vt0, srd_out, s_out_off, ostride_s):
    e("s_nop 7")
    e("s_mov_b64 exec, 0xffff")
    for j in range(8):
        e(f"ds_write_b128 v{vaddr}, v[{acc_base+4*j}:{acc_base+4*j+3}] offset:{16*j}")
    e("s_mov_b64 exec, -1")
    e("s_waitcnt lgkmcnt(0)")
    e("s_barrier")
    t = vt0
    e(f"v_lshlrev_b32 v{t}, 2, v0")
    for w in range(4):
        e(f"ds_read_b32 v{t+2+w}, v{t} offset:{2048*w}")
        e(f"ds_read_b32 v{t+6+w}, v{t} offset:{2048*w+1024}")
    e(f"v_and_b32 v{t+10}, 3, v0")
    e(f"v_mul_lo_u32 v{t+10}, v{t+10}, s{ostride_s}")
    e(f"v_lshrrev_b32 v{t+11}, 5, v0")
    e(f"v_lshlrev_b32 v{t+11}, 3, v{t+11}")
    e(f"v_bfe_u32 v{t+12}, v0, 2, 3")
    e(f"v_add3_u32 v{t+10}, v{t+10}, v{t+11}, v{t+12}")
    e(f"v_lshlrev_b32 v{t+10}, 2, v{t+10}")
    e("s_waitcnt lgkmcnt(0)")
    e(f"v_add_f32 v{t+2}, v{t+2}, v{t+3}")
    e(f"v_add_f32 v{t+4}, v{t+4}, v{t+5}")
    e(f"v_add_f32 v{t+6}, v{t+6}, v{t+7}")
    e(f"v_add_f32 v{t+8}, v{t+8}, v{t+9}")
    e(f"v_add_f32 v{t+2}, v{t+2}, v{t+4}")
    e(f"v_add_f32 v{t+6}, v{t+6}, v{t+8}")
    e(f"buffer_store_dword v{t+2}, v{t+10}, s[{srd_out}:{srd_out+3}], s{s_out_off} offen")
    e(f"buffer_store_dword v{t+6}, v{t+10}, s[{srd_out}:{srd_out+3}], s{s_out_off} offen offset:256")

def xlane_g(v, tmp, op):
    for sw in ("v_permlane16_swap_b32", "v_permlane32_swap_b32"):
        e(f"v_mov_b32 v{tmp}, v{v}")
        e("s_nop 1")
        e(f"{sw} v{v}, v{tmp}")
        e("s_nop 1")
        e(f"{op} v{v}, v{v}, v{tmp}")

def k1():
    kernel_begin("k1_proj_kernel")
    ts_begin()
    e("s_cmp_ge_u32 s2, 240")
    e("s_cbranch_scc1 K1_EXIT")
    e("s_load_dwordx2 s[4:5], s[0:1], 0")
    e("s_load_dwordx2 s[6:7], s[0:1], 24")
    e("s_load_dwordx2 s[8:9], s[0:1], 48")
    e("s_load_dwordx2 s[10:11], s[0:1], 56")
    e("s_load_dwordx2 s[12:13], s[0:1], 96")
    e("s_lshr_b32 s3, s2, 2")
    e("s_and_b32 s14, s2, 3")
    e("v_lshrrev_b32 v1, 6, v0")
    e("v_and_b32 v2, 63, v0")
    e("v_readfirstlane_b32 s15, v1")
    e("v_and_b32 v3, 15, v2")
    e("v_lshrrev_b32 v4, 4, v2")
    e("s_mov_b32 s44, 0x05040100")
    e("s_mov_b32 s45, 0x07060302")
    e("s_waitcnt lgkmcnt(0)")
    srd(16, 4, 4096)
    srd(20, 12, WS_END)
    e("s_cmp_ge_u32 s3, 32")
    e("s_cbranch_scc1 K1_NOTQ")
    srd(24, 6, 4194304)
    e("s_mov_b32 s36, 8192")
    e("s_lshl_b32 s37, s3, 8")
    e(f"s_mov_b32 s38, {WS_QP}")
    e("s_mov_b32 s39, 4096")
    e("s_lshl_b32 s40, s3, 7")
    e("s_branch K1_COMMON")
    L.append("K1_NOTQ:")
    e("s_cmp_ge_u32 s3, 46")
    e("s_cbranch_scc1 K1_UP")
    srd(24, 8, 1835008)
    e("s_sub_u32 s3, s3, 32")
    e(f"s_mov_b32 s38, {WS_GP}")
    e("s_branch K1_FF")
    L.append("K1_UP:")
    srd(24, 10, 1835008)
    e("s_sub_u32 s3, s3, 46")
    e(f"s_mov_b32 s38, {WS_UP}")
    L.append("K1_FF:")
    e("s_mov_b32 s36, 3584")
    e("s_lshl_b32 s37, s3, 8")
    e("s_mov_b32 s39, 1792")
    e("s_lshl_b32 s40, s3, 7")
    L.append("K1_COMMON:")
    e("s_lshl_b32 s41, s14, 7")
    e("s_lshl_b32 s42, s15, 5")
    e("s_add_u32 s41, s41, s42")
    e("s_mul_i32 s28, s41, s36")
    e("s_add_u32 s28, s28, s37")
    for i in range(1, 8):
        e(f"s_add_u32 s{28+i}, s{27+i}, s36")
    e("s_lshl_b32 s46, s36, 3")
    e("v_mul_lo_u32 v5, v4, s46")
    e("v_lshl_add_u32 v5, v3, 4, v5")
    e("v_and_b32 v6, 3, v3")
    e("v_lshlrev_b32 v6, 10, v6")
    e("v_lshl_add_u32 v6, v4, 4, v6")
    e("s_lshl_b32 s43, s41, 1")
    e("buffer_load_dwordx4 v[8:11], v6, s[16:19], s43 offen")
    for i in range(8):
        e(f"buffer_load_dwordx4 v[{16+4*i}:{19+4*i}], v5, s[24:27], s{28+i} offen sc1 nt")
    e("s_lshl_b32 s47, s14, 2")
    e("s_mul_i32 s47, s47, s39")
    e("s_add_u32 s47, s47, s40")
    e("s_lshl_b32 s47, s47, 2")
    e("s_add_u32 s47, s47, s38")
    e("s_lshl_b32 s48, s15, 11")
    e("v_lshlrev_b32 v7, 7, v3")
    e("v_add_u32 v7, s48, v7")
    e("s_waitcnt vmcnt(0)")
    gemv_macro(8, 16, 48, 80, 44, 45)
    lds_reduce4_store(48, 7, 96, 20, 47, 39)
    L.append("K1_END:")
    ts_end(0, 20, 15)
    L.append("K1_EXIT:")
    e("s_endpgm")

def k2():
    kernel_begin("k2_attn_kernel")
    LDS_Q = 0
    LDS_ST = 1024
    LDS_O = 2048
    ts_begin()
    e("s_cmp_ge_u32 s2, 256")
    e("s_cbranch_scc1 K2_EXIT")
    e("s_load_dwordx4 s[4:7], s[0:1], 8")
    e("s_load_dwordx2 s[8:9], s[0:1], 96")
    e("s_lshr_b32 s3, s2, 3")
    e("s_and_b32 s10, s2, 7")
    e("v_lshrrev_b32 v1, 6, v0")
    e("v_and_b32 v2, 63, v0")
    e("v_readfirstlane_b32 s11, v1")
    e("v_and_b32 v3, 15, v2")
    e("v_lshrrev_b32 v4, 4, v2")
    e("s_mov_b32 s44, 0x05040100")
    e("s_mov_b32 s45, 0x07060302")
    e("s_mov_b32 s46, 0x3e0293ee")
    e("s_waitcnt lgkmcnt(0)")
    srd(12, 4, 134217728)
    srd(16, 6, 134217728)
    srd(20, 8, WS_END)
    e("s_lshr_b32 s24, s3, 3")
    e("s_and_b32 s25, s3, 7")
    e("s_lshl_b32 s26, s24, 14")
    e("s_lshl_b32 s27, s25, 11")
    e("s_add_u32 s26, s26, s27")
    e(f"s_add_u32 s26, s26, {WS_QP}")
    e("v_and_b32 v5, 511, v0")
    e("v_lshlrev_b32 v5, 2, v5")
    for ks in range(4):
        if ks:
            e("s_add_u32 s26, s26, 65536")
        e(f"buffer_load_dword v{8+ks}, v5, s[20:23], s26 offen")
    e("s_lshl_b32 s28, s3, 22")
    e("s_lshl_b32 s29, s10, 17")
    e("s_add_u32 s28, s28, s29")
    e("s_lshl_b32 s29, s11, 13")
    e("s_add_u32 s28, s28, s29")
    e("s_add_u32 s28, s28, 3145728")
    e("s_add_u32 s29, s28, 4096")
    e("v_lshlrev_b32 v6, 8, v3")
    e("v_lshl_add_u32 v6, v4, 4, v6")
    e("v_lshlrev_b32 v7, 10, v4")
    e("v_lshl_add_u32 v7, v3, 4, v7")
    for blk in range(2):
        for j in range(4):
            r = 16 + 16 * blk + 4 * j
            e(f"buffer_load_dwordx4 v[{r}:{r+3}], v6, s[12:15], s{28+blk} offen offset:{64*j} sc1 nt")
    for i in range(8):
        r = 48 + 4 * i
        e(f"buffer_load_dwordx4 v[{r}:{r+3}], v7, s[16:19], s{28+(i>>2)} offen offset:{256*(i&3)} sc1 nt")
    e("s_waitcnt vmcnt(16)")
    e("v_add_f32 v8, v8, v9")
    e("v_add_f32 v10, v10, v11")
    e("v_add_f32 v8, v8, v10")
    e("v_cvt_pk_bf16_f32 v8, v8, v8")
    e("v_lshrrev_b32 v5, 1, v5")
    e(f"ds_write_b16 v5, v8 offset:{LDS_Q}")
    e("s_waitcnt lgkmcnt(0)")
    e("s_barrier")
    e("v_and_b32 v5, 3, v3")
    e("v_lshlrev_b32 v5, 8, v5")
    e("v_lshl_add_u32 v5, v4, 4, v5")
    for j in range(4):
        e(f"ds_read_b128 v[{80+4*j}:{83+4*j}], v5 offset:{LDS_Q+64*j}")
    e("s_waitcnt vmcnt(8) lgkmcnt(0)")
    for blk in range(2):
        d = 96 + 4 * blk
        for j in range(4):
            r = 16 + 16 * blk + 4 * j
            cin = "0" if j == 0 else f"v[{d}:{d+3}]"
            e(f"v_mfma_f32_16x16x32_bf16 v[{d}:{d+3}], v[{r}:{r+3}], v[{80+4*j}:{83+4*j}], {cin}")
    e("s_nop 7")
    e("v_max3_f32 v108, v96, v97, v98")
    e("v_max3_f32 v108, v108, v99, v100")
    e("v_max3_f32 v108, v108, v101, v102")
    e("v_max_f32 v108, v108, v103")
    xlane_g(108, 109, "v_max_f32")
    e("v_mul_f32 v110, s46, v108")
    e("v_sub_f32 v111, 0, v110")
    for i in range(8):
        e(f"v_fma_f32 v{96+i}, v{96+i}, s46, v111")
    for i in range(8):
        e(f"v_exp_f32 v{96+i}, v{96+i}")
    e("s_nop 0")
    e("v_add_f32 v112, v96, v97")
    e("v_add_f32 v113, v98, v99")
    e("v_add_f32 v114, v100, v101")
    e("v_add_f32 v115, v102, v103")
    e("v_add_f32 v112, v112, v113")
    e("v_add_f32 v114, v114, v115")
    e("v_add_f32 v112, v112, v114")
    xlane_g(112, 113, "v_add_f32")
    for t in range(4):
        e(f"v_cvt_pk_bf16_f32 v{104+t}, v{96+2*t}, v{97+2*t}")
    e("s_waitcnt vmcnt(0)")
    gemv_macro(104, 48, 16, 80, 44, 45)
    e("s_nop 7")
    e("s_lshl_b32 s30, s11, 11")
    e("v_lshlrev_b32 v5, 7, v3")
    e("v_add_u32 v5, s30, v5")
    e("s_mov_b64 exec, 0xffff")
    for j in range(8):
        e(f"ds_write_b128 v5, v[{16+4*j}:{19+4*j}] offset:{LDS_O+16*j}")
    e("s_mov_b64 exec, 0xf")
    e("s_lshl_b32 s30, s11, 5")
    e("v_lshlrev_b32 v5, 3, v3")
    e("v_add_u32 v5, s30, v5")
    e("v_mov_b32 v111, v112")
    e(f"ds_write_b64 v5, v[110:111] offset:{LDS_ST}")
    e("s_mov_b64 exec, -1")
    e("s_waitcnt lgkmcnt(0)")
    e("s_barrier")
    e("s_cmp_ge_u32 s11, 8")
    e("s_cbranch_scc1 K2_END")
    e("v_and_b32 v5, 3, v0")
    e("v_lshlrev_b32 v5, 3, v5")
    e("v_lshlrev_b32 v6, 2, v0")
    for w in range(16):
        e(f"ds_read_b64 v[{16+2*w}:{17+2*w}], v5 offset:{LDS_ST+32*w}")
    for w in range(16):
        e(f"ds_read_b32 v{48+w}, v6 offset:{LDS_O+2048*w}")
    e("s_waitcnt lgkmcnt(0)")
    e("v_max3_f32 v8, v16, v18, v20")
    for w in range(3, 15, 2):
        e(f"v_max3_f32 v8, v8, v{16+2*w}, v{18+2*w}")
    e("v_max_f32 v8, v8, v46")
    for w in range(16):
        e(f"v_sub_f32 v{16+2*w}, v{16+2*w}, v8")
    for w in range(16):
        e(f"v_exp_f32 v{16+2*w}, v{16+2*w}")
    e("v_mov_b32 v9, 0")
    e("v_mov_b32 v10, 0")
    for w in range(16):
        e(f"v_fmac_f32 v9, v{16+2*w}, v{17+2*w}")
        e(f"v_fmac_f32 v10, v{16+2*w}, v{48+w}")
    e("s_lshl_b32 s30, s24, 5")
    e("s_lshl_b32 s31, s25, 2")
    e("s_add_u32 s30, s30, s31")
    e("s_lshl_b32 s30, s30, 3")
    e("s_add_u32 s30, s30, s10")
    e("s_lshl_b32 s31, s30, 9")
    e(f"s_add_u32 s31, s31, {WS_OP}")
    e("v_and_b32 v11, 3, v0")
    e("v_lshlrev_b32 v12, 12, v11")
    e("v_lshrrev_b32 v13, 5, v0")
    e("v_lshlrev_b32 v13, 5, v13")
    e("v_bfe_u32 v14, v0, 2, 3")
    e("v_lshl_add_u32 v13, v14, 2, v13")
    e("v_add_u32 v12, v12, v13")
    e("buffer_store_dword v10, v12, s[20:23], s31 offen")
    e("s_cmp_lg_u32 s11, 0")
    e("s_cbranch_scc1 K2_END")
    e("s_mov_b64 exec, 0xf")
    e("s_lshl_b32 s31, s30, 3")
    e(f"s_add_u32 s31, s31, {WS_ST}")
    e("v_lshlrev_b32 v12, 6, v11")
    e("v_mov_b32 v7, v9")
    e("v_mov_b32 v6, v8")
    e("buffer_store_dwordx2 v[6:7], v12, s[20:23], s31 offen")
    L.append("K2_END:")
    ts_end(1, 20, 11)
    L.append("K2_EXIT:")
    e("s_endpgm")

def k3():
    kernel_begin("k3_oproj_kernel")
    LDS_A = 8192
    ts_begin()
    e("s_cmp_ge_u32 s2, 184")
    e("s_cbranch_scc1 K3_EXIT")
    e("s_load_dwordx2 s[4:5], s[0:1], 32")
    e("s_load_dwordx2 s[6:7], s[0:1], 64")
    e("s_load_dwordx2 s[8:9], s[0:1], 96")
    e("s_lshr_b32 s3, s2, 2")
    e("s_and_b32 s10, s2, 3")
    e("v_lshrrev_b32 v1, 6, v0")
    e("v_and_b32 v2, 63, v0")
    e("v_readfirstlane_b32 s11, v1")
    e("v_and_b32 v3, 15, v2")
    e("v_lshrrev_b32 v4, 4, v2")
    e("s_mov_b32 s44, 0x05040100")
    e("s_mov_b32 s45, 0x07060302")
    e("v_lshlrev_b32 v5, 13, v4")
    e("v_lshl_add_u32 v5, v3, 4, v5")
    e("s_lshl_b32 s24, s11, 15")
    e("s_lshl_b32 s25, s10, 8")
    e("s_add_u32 s24, s24, s25")
    e("s_waitcnt lgkmcnt(0)")
    srd(20, 8, WS_END)
    e("s_cmp_ge_u32 s3, 32")
    e("s_cbranch_scc1 K3_FFN")
    srd(12, 4, 4194304)
    e("s_lshl_b32 s25, s3, 17")
    e("s_add_u32 s24, s24, s25")
    e("s_add_u32 s25, s24, 4096")
    for i in range(8):
        e(f"buffer_load_dwordx4 v[{16+4*i}:{19+4*i}], v5, s[12:15], s{24+(i>>2)} offen offset:{1024*(i&3)} sc1 nt")
    e("v_lshrrev_b32 v6, 7, v0")
    e("v_and_b32 v7, 127, v0")
    e("v_lshlrev_b32 v8, 17, v6")
    e("v_lshl_add_u32 v8, v7, 2, v8")
    e("v_add_u32 v9, 0x40000, v8")
    e("v_lshlrev_b32 v10, 11, v6")
    e("v_add_u32 v11, 0x1000, v10")
    e("s_lshl_b32 s26, s3, 12")
    e(f"s_add_u32 s26, s26, {WS_OP}")
    e("s_lshl_b32 s27, s3, 6")
    e(f"s_add_u32 s27, s27, {WS_ST}")
    for s in range(8):
        e(f"buffer_load_dword v{96+s}, v8, s[20:23], s26 offen offset:{512*s}")
        e(f"buffer_load_dword v{104+s}, v9, s[20:23], s26 offen offset:{512*s}")
        e(f"buffer_load_dwordx2 v[{112+2*s}:{113+2*s}], v10, s[20:23], s27 offen offset:{8*s}")
        e(f"buffer_load_dwordx2 v[{128+2*s}:{129+2*s}], v11, s[20:23], s27 offen offset:{8*s}")
    e("s_waitcnt vmcnt(0)")
    for el in range(2):
        ob = 96 + 8 * el
        sb = 112 + 16 * el
        e(f"v_max3_f32 v12, v{sb}, v{sb+2}, v{sb+4}")
        e(f"v_max3_f32 v12, v12, v{sb+6}, v{sb+8}")
        e(f"v_max3_f32 v12, v12, v{sb+10}, v{sb+12}")
        e(f"v_max_f32 v12, v12, v{sb+14}")
        for s in range(8):
            e(f"v_sub_f32 v{sb+2*s}, v{sb+2*s}, v12")
        for s in range(8):
            e(f"v_exp_f32 v{sb+2*s}, v{sb+2*s}")
        e("v_mov_b32 v13, 0")
        e("v_mov_b32 v14, 0")
        for s in range(8):
            e(f"v_fmac_f32 v13, v{sb+2*s}, v{sb+2*s+1}")
            e(f"v_fmac_f32 v14, v{sb+2*s}, v{ob+s}")
        e("v_rcp_f32 v13, v13")
        e("s_nop 0")
        e(f"v_mul_f32 v{80+el}, v14, v13")
    e("s_branch K3_ACT")
    L.append("K3_FFN:")
    srd(12, 6, 1835008)
    e("s_sub_u32 s3, s3, 32")
    e("s_lshl_b32 s25, s3, 17")
    e("s_add_u32 s24, s24, s25")
    e("s_add_u32 s25, s24, 4096")
    for i in range(8):
        e(f"buffer_load_dwordx4 v[{16+4*i}:{19+4*i}], v5, s[12:15], s{24+(i>>2)} offen offset:{1024*(i&3)} sc1 nt")
    e("v_lshrrev_b32 v6, 7, v0")
    e("v_and_b32 v7, 127, v0")
    e("v_mov_b32 v8, 7168")
    e("v_mul_lo_u32 v8, v6, v8")
    e("v_lshl_add_u32 v8, v7, 2, v8")
    e("v_add_u32 v9, 14336, v8")
    e("s_lshl_b32 s26, s3, 9")
    e(f"s_add_u32 s27, s26, {WS_UP}")
    e(f"s_add_u32 s26, s26, {WS_GP}")
    for ks in range(4):
        e(f"buffer_load_dword v{96+ks}, v8, s[20:23], s26 offen")
        e(f"buffer_load_dword v{100+ks}, v9, s[20:23], s26 offen")
        e(f"buffer_load_dword v{104+ks}, v8, s[20:23], s27 offen")
        e(f"buffer_load_dword v{108+ks}, v9, s[20:23], s27 offen")
        if ks < 3:
            e("s_add_u32 s26, s26, 28672")
            e("s_add_u32 s27, s27, 28672")
    e("s_waitcnt vmcnt(0)")
    for el in range(2):
        gb = 96 + 4 * el
        ub = 104 + 4 * el
        e(f"v_add_f32 v{gb}, v{gb}, v{gb+1}")
        e(f"v_add_f32 v{gb+2}, v{gb+2}, v{gb+3}")
        e(f"v_add_f32 v{gb}, v{gb}, v{gb+2}")
        e(f"v_add_f32 v{ub}, v{ub}, v{ub+1}")
        e(f"v_add_f32 v{ub+2}, v{ub+2}, v{ub+3}")
        e(f"v_add_f32 v{ub}, v{ub}, v{ub+2}")
        e(f"v_cvt_pk_bf16_f32 v12, v{gb}, v{ub}")
        e("v_lshlrev_b32 v13, 16, v12")
        e("v_and_b32 v14, 0xffff0000, v12")
        e("v_max_f32 v13, 0, v13")
        e(f"v_mul_f32 v{80+el}, v13, v14")
    L.append("K3_ACT:")
    e("v_cvt_pk_bf16_f32 v82, v80, v81")
    e("v_lshlrev_b32 v12, 8, v6")
    e("v_lshl_add_u32 v12, v7, 1, v12")
    e(f"ds_write_b16 v12, v82 offset:{LDS_A}")
    e(f"ds_write_b16_d16_hi v12, v82 offset:{LDS_A+512}")
    e("s_waitcnt lgkmcnt(0)")
    e("s_barrier")
    e("v_and_b32 v12, 3, v3")
    e("v_lshlrev_b32 v12, 8, v12")
    e("v_lshl_add_u32 v12, v4, 4, v12")
    e("s_lshl_b32 s28, s11, 6")
    e("v_add_u32 v12, s28, v12")
    e(f"ds_read_b128 v[8:11], v12 offset:{LDS_A}")
    e("s_lshr_b32 s3, s2, 2")
    e("s_lshl_b32 s47, s3, 13")
    e("s_lshl_b32 s28, s10, 9")
    e("s_add_u32 s47, s47, s28")
    e(f"s_add_u32 s47, s47, {WS_P3}")
    e("s_mov_b32 s39, 512")
    e("s_lshl_b32 s48, s11, 11")
    e("v_lshlrev_b32 v7, 7, v3")
    e("v_add_u32 v7, s48, v7")
    e("s_waitcnt lgkmcnt(0)")
    gemv_macro(8, 16, 48, 80, 44, 45)
    lds_reduce4_store(48, 7, 96, 20, 47, 39)
    L.append("K3_END:")
    ts_end(2, 20, 11)
    L.append("K3_EXIT:")
    e("s_endpgm")

def rne(v, tmp):
    e(f"v_cvt_pk_bf16_f32 v{tmp}, v{v}, v{v}")
    e(f"v_lshlrev_b32 v{v}, 16, v{tmp}")

def k4():
    kernel_begin("k4_final_kernel")
    ts_begin()
    e("s_cmp_ge_u32 s2, 8")
    e("s_cbranch_scc1 K4_EXIT")
    e("s_load_dwordx2 s[4:5], s[0:1], 0")
    e("s_load_dwordx2 s[6:7], s[0:1], 72")
    e("s_load_dwordx2 s[8:9], s[0:1], 80")
    e("s_load_dwordx2 s[10:11], s[0:1], 96")
    e("s_lshl_b32 s3, s2, 8")
    e("v_add_u32 v1, s3, v0")
    e("v_and_b32 v2, 63, v0")
    e("s_waitcnt lgkmcnt(0)")
    srd(12, 4, 4096)
    srd(16, 6, 1024)
    srd(20, 8, 4096)
    srd(24, 10, WS_END)
    e("v_lshlrev_b32 v3, 2, v1")
    e(f"s_mov_b32 s28, {WS_P3}")
    for kg in range(46):
        e(f"buffer_load_dword v{16+kg}, v3, s[24:27], s28 offen")
        if kg < 45:
            e("s_add_u32 s28, s28, 8192")
    e("s_lshr_b32 s29, s2, 1")
    e("s_lshl_b32 s29, s29, 10")
    e("v_lshlrev_b32 v4, 4, v2")
    e("buffer_load_dwordx4 v[64:67], v4, s[12:15], s29 offen")
    e("buffer_load_dwordx4 v[68:71], v4, s[16:19], 0 offen")
    e("s_waitcnt vmcnt(0)")
    e("v_mov_b32 v80, 0")
    for q in range(4):
        e(f"v_lshlrev_b32 v72, 16, v{64+q}")
        e(f"v_and_b32 v73, 0xffff0000, v{64+q}")
        e(f"v_lshlrev_b32 v74, 16, v{68+q}")
        e(f"v_and_b32 v75, 0xffff0000, v{68+q}")
        e("v_mul_f32 v72, v72, v74")
        e("v_mul_f32 v73, v73, v75")
        e("v_cvt_pk_bf16_f32 v72, v72, v73")
        e("v_lshlrev_b32 v73, 16, v72")
        e("v_and_b32 v72, 0xffff0000, v72")
        e("v_add_f32 v80, v80, v73")
        e("v_add_f32 v80, v80, v72")
    for ctrl in ("quad_perm:[1,0,3,2]", "quad_perm:[2,3,0,1]", "row_half_mirror", "row_mirror"):
        e("s_nop 1")
        e(f"v_add_f32_dpp v80, v80, v80 {ctrl} row_mask:0xf bank_mask:0xf")
    xlane_g(80, 81, "v_add_f32")
    rne(80, 81)
    e("v_mul_f32 v80, 0xbfb8aa3b, v80")
    e("v_exp_f32 v80, v80")
    e("s_nop 0")
    e("v_add_f32 v80, 1.0, v80")
    e("v_rcp_f32 v80, v80")
    e("s_nop 0")
    rne(80, 81)
    e("v_add_f32 v16, v16, v17")
    for kg in range(2, 32):
        e(f"v_add_f32 v16, v16, v{16+kg}")
    e("v_add_f32 v48, v48, v49")
    for kg in range(34, 46):
        e(f"v_add_f32 v48, v48, v{16+kg}")
    rne(16, 81)
    rne(48, 81)
    e("v_mul_f32 v16, v80, v16")
    rne(16, 81)
    e("v_sub_f32 v82, 1.0, v80")
    rne(82, 81)
    e("v_mul_f32 v48, v82, v48")
    rne(48, 81)
    e("v_add_f32 v16, v16, v48")
    e("v_cvt_pk_bf16_f32 v16, v16, v16")
    e("v_lshlrev_b32 v3, 1, v1")
    e("buffer_store_short v16, v3, s[20:23], 0 offen")
    L.append("K4_END:")
    if TS:
        e("v_lshrrev_b32 v1, 6, v0")
        e("s_nop 0")
        e("v_readfirstlane_b32 s30, v1")
    ts_end(3, 24, 30)
    L.append("K4_EXIT:")
    e("s_endpgm")

def descriptors():
    L.append('.section .rodata,"a"')
    for name, vg, sg in (("k1_proj_kernel", 112, 96), ("k2_attn_kernel", 120, 96), ("k3_oproj_kernel", 144, 96), ("k4_final_kernel", 96, 96)):
        L.append(".p2align 6")
        L.append(f".amdhsa_kernel {name}")
        L.append(f"  .amdhsa_next_free_vgpr {vg}")
        L.append(f"  .amdhsa_next_free_sgpr {sg}")
        L.append(f"  .amdhsa_accum_offset {vg}")
        L.append("  .amdhsa_group_segment_fixed_size 0")
        L.append("  .amdhsa_kernarg_size 104")
        L.append("  .amdhsa_user_sgpr_count 2")
        L.append("  .amdhsa_user_sgpr_kernarg_segment_ptr 1")
        L.append("  .amdhsa_system_sgpr_workgroup_id_x 1")
        L.append(".end_amdhsa_kernel")

header()
k1(); k2(); k3(); k4()
descriptors()
open(OUT, "w").write("\n".join(L) + "\n")
print("wrote", OUT, len(L), "lines")
```
